```python
import torch

def _softmax(x, axis=-1):
    return torch.softmax(x, dim=axis)
def _gelu(x):
    return torch.nn.functional.gelu(x, approximate="tanh")
def _silu(x):
    return torch.nn.functional.silu(x)
def _sigmoid(x):
    return torch.sigmoid(x)
def _layernorm(x, axis=-1, eps=1e-5):
    m = x.mean(dim=axis, keepdim=True)
    v = x.var(dim=axis, keepdim=True, unbiased=False)
    return (x - m) / torch.sqrt(v + eps)
def _scatter_add(tgt, idx, src, axis=0):
    return tgt.clone().index_add_(axis, idx, src)
def _segment_sum(src, seg, n):
    out = torch.zeros((n,) + src.shape[1:], dtype=src.dtype)
    return out.index_add_(0, seg, src)
def _pad(x, pw):
    flat = tuple(v for pair in reversed(pw) for v in pair)
    return torch.nn.functional.pad(x, flat)

kernel_name = 'interleave_layers__spectral_fnet__glu_gated_glu__prompt'

def setup_inputs():

    _w = (lambda a: (lambda t: t.to(torch.bfloat16) if t.is_floating_point() else t)(torch.as_tensor(a)))
    def _A_setup():
        B, S, D = 1, 2048, 1024
        ns = torch.arange(S)[:, None] * torch.arange(S)[None, :]
        nd = torch.arange(D)[:, None] * torch.arange(D)[None, :]
        Ws_re = torch.cos(-2.0 * torch.pi * ns / S).to(float)
        Ws_im = torch.sin(-2.0 * torch.pi * ns / S).to(float)
        Wd_re = torch.cos(-2.0 * torch.pi * nd / D).to(float)
        Wd_im = torch.sin(-2.0 * torch.pi * nd / D).to(float)
        return {
            "x": _w((lambda *s: torch.randn(*s, dtype=torch.bfloat16) * 0.05)(B, S, D)),
            "dft_seq_re": _w(Ws_re),
            "dft_seq_im": _w(Ws_im),
            "dft_hid_re": _w(Wd_re),
            "dft_hid_im": _w(Wd_im),
        }
    _A_in = _A_setup()

    def _B_setup():
        B, S, D, F = 1, 2048, 1024, 3584
        return {
            "x": _w((lambda *s: torch.randn(*s, dtype=torch.bfloat16) * 0.05)(B, S, D)),
            "w_gate": _w((lambda *s: torch.randn(*s, dtype=torch.bfloat16) * 1.6)(D, F)),
            "w_up": _w((lambda *s: torch.randn(*s, dtype=torch.bfloat16) * 0.8)(D, F)),
            "w_down": _w((lambda *s: torch.randn(*s, dtype=torch.bfloat16) * 0.8)(F, D)),
        }
    _B_in = _B_setup()

    return {
        "A_x": _A_in["x"],
        "A_dft_seq_re": _A_in["dft_seq_re"],
        "A_dft_seq_im": _A_in["dft_seq_im"],
        "A_dft_hid_re": _A_in["dft_hid_re"],
        "A_dft_hid_im": _A_in["dft_hid_im"],
        "B_x": _B_in["x"],
        "B_w_gate": _B_in["w_gate"],
        "B_w_up": _B_in["w_up"],
        "B_w_down": _B_in["w_down"],
    }

def reference(A_x, A_dft_seq_re, A_dft_seq_im, A_dft_hid_re, A_dft_hid_im, B_x, B_w_gate, B_w_up, B_w_down):
    def _A_ref(x, dft_seq_re, dft_seq_im, dft_hid_re, dft_hid_im):
        a = torch.einsum("bsd,ed->bse", x, dft_hid_re)
        b = torch.einsum("bsd,ed->bse", x, dft_hid_im)
        y = torch.einsum("ts,bse->bte", dft_seq_re, a) - torch.einsum("ts,bse->bte", dft_seq_im, b)
        return y

    def _B_ref(x, w_gate, w_up, w_down):
        g = torch.einsum("bsd,df->bsf", x, w_gate)
        u = torch.einsum("bsd,df->bsf", x, w_up)
        h = _sigmoid(g) * u
        return torch.einsum("bsf,fd->bsd", h, w_down)

    x = A_x
    x = x + _A_ref(_layernorm(x, axis=-1), A_dft_seq_re, A_dft_seq_im, A_dft_hid_re, A_dft_hid_im)
    x = x + _B_ref(_layernorm(x, axis=-1), B_w_gate, B_w_up, B_w_down)
    x = x + _A_ref(_layernorm(x, axis=-1), A_dft_seq_re, A_dft_seq_im, A_dft_hid_re, A_dft_hid_im)
    x = x + _B_ref(_layernorm(x, axis=-1), B_w_gate, B_w_up, B_w_down)
    return x
```

```python
import sys, math

S_, D_, F_ = 2048, 1024, 3584
MB = 1 << 20
KARG = dict(Ax=0, Cr=1, Ci=2, Wre=3, Wim=4, Bx=5, Wg=6, Wu=7, Wd=8, out=9, dbg=10, ws=11)
WS = dict(x=0, xn=4 * MB, aT=8 * MB, bT=12 * MB, P=16 * MB, Q=20 * MB, h=24 * MB, o=40 * MB)

HEADER = """; Kernarg layout for this problem (96 bytes, ptrs only, base s[0:1]):
;   offset  88: d_ws      268435456 bytes workspace
"""


def log2(x):
    l = int(math.log2(x))
    assert (1 << l) == x, x
    return l


class K:
    def __init__(self, name):
        self.name = name
        self.L = []
        self.nlabel = 0

    def __call__(self, s):
        self.L.append("    " + s)

    def c(self, s):
        self.L.append("    ; " + s)

    def label(self, l):
        self.L.append(l + ":")

    def newlabel(self, p="L"):
        self.nlabel += 1
        return "%s_%s_%d" % (self.name, p, self.nlabel)

    def text(self, vgprs, sgprs=102):
        out = [".globl %s" % self.name, ".p2align 8", ".type %s,@function" % self.name, self.name + ":"]
        out += self.L
        out.append("    s_endpgm")
        return "\n".join(out) + "\n"

    def desc(self, vgprs, sgprs=102):
        acc = (vgprs + 3) // 4 * 4
        return """.amdhsa_kernel %s
  .amdhsa_next_free_vgpr %d
  .amdhsa_next_free_sgpr %d
  .amdhsa_accum_offset %d
  .amdhsa_group_segment_fixed_size 0
  .amdhsa_kernarg_size 96
  .amdhsa_user_sgpr_count 2
  .amdhsa_user_sgpr_kernarg_segment_ptr 1
  .amdhsa_system_sgpr_workgroup_id_x 1
.end_amdhsa_kernel
""" % (self.name, vgprs, sgprs, acc)


def vr(b, n=1):
    return "v%d" % b if n == 1 else "v[%d:%d]" % (b, b + n - 1)


def sr(b, n=1):
    return "s%d" % b if n == 1 else "s[%d:%d]" % (b, b + n - 1)


def load_ptr(k, sdst, slot):
    k("s_load_dwordx2 %s, s[0:1], %d" % (sr(sdst, 2), slot * 8))


def build_srd(k, d, ptr, size, const_off=0, dyn=None):
    if dyn is not None:
        k("s_add_u32 %s, %s, %s" % (sr(d), sr(ptr), sr(dyn)))
        k("s_addc_u32 %s, %s, 0" % (sr(d + 1), sr(ptr + 1)))
        if const_off:
            k("s_add_u32 %s, %s, 0x%x" % (sr(d), sr(d), const_off))
            k("s_addc_u32 %s, %s, 0" % (sr(d + 1), sr(d + 1)))
        k("s_sub_u32 %s, 0x%x, %s" % (sr(d + 2), size, sr(dyn)))
    else:
        if const_off:
            k("s_add_u32 %s, %s, 0x%x" % (sr(d), sr(ptr), const_off))
            k("s_addc_u32 %s, %s, 0" % (sr(d + 1), sr(ptr + 1)))
        else:
            k("s_mov_b32 %s, %s" % (sr(d), sr(ptr)))
            k("s_mov_b32 %s, %s" % (sr(d + 1), sr(ptr + 1)))
        k("s_mov_b32 %s, 0x%x" % (sr(d + 2), size))
    k("s_and_b32 %s, %s, 0xffff" % (sr(d + 1), sr(d + 1)))
    k("s_mov_b32 %s, 0x20000" % sr(d + 3))


class GemmCfg:
    pass


def gen_gemm(name, c):
    k = K(name)
    MF, NF, S = c.MF, c.NF, c.S
    MT = 2 * MF * 32
    NTL = 2 * NF * 32
    nk = c.Kdim // 64
    MSTAGE = MT * 128
    NSTAGE = NTL * 128
    NREG = S * MSTAGE
    LDS_BYTES = S * (MSTAGE + NSTAGE)
    PM = MSTAGE // 4096
    PN = NSTAGE // 4096
    P = PM + PN
    assert PM <= 4 and PN <= 4
    NWG = c.NWG

    sSRDM, sSRDN, sSRDC = 4, 8, 12
    sT, sTM, sTN, sZ, sW, sWM, sWN = 16, 17, 18, 19, 20, 21, 22
    sTmp, sTmp2 = 23, 3
    sPM0, sPM1, sPN0, sPN1, sPC = 24, 26, 28, 30, 32
    sKM, sKN, sLoop = 34, 35, 36
    sM0M, sM0N = 40, 48
    vDM = 16
    vDN = 20
    vRM = 24
    vRN = 28
    FR = [32, 32 + (MF + NF) * 4]
    ACC = FR[1] + (MF + NF) * 4
    ACC = (ACC + 3) // 4 * 4
    NACC = MF * NF * 16
    VGPRS = ACC + NACC

    def fragM(fs, mf):
        return FR[fs] + mf * 4

    def fragN(fs, nf):
        return FR[fs] + MF * 4 + nf * 4

    def acc(mf, nf):
        return ACC + (mf * NF + nf) * 16

    lend = k.newlabel("end")
    k("s_cmp_ge_u32 s2, %d" % NWG)
    k("s_cbranch_scc1 %s" % lend)
    srcs = [c.msrc[0], c.msrc[1], c.nsrc[0], c.nsrc[1], c.dst[0], c.dst[1]]
    need_ws = any(s[0] == "ws" for s in srcs)
    sWS = 38
    if need_ws:
        load_ptr(k, sWS, KARG["ws"])
    ptrs = {}

    def get_ptr(src, sreg):
        if src[0] == "arg":
            load_ptr(k, sreg, src[1])
            return (sreg, 0)
        return (sWS, src[1])

    pm = [get_ptr(c.msrc[0], sPM0), get_ptr(c.msrc[1], sPM1)]
    pn = [get_ptr(c.nsrc[0], sPN0), get_ptr(c.nsrc[1], sPN1)]
    pc = [get_ptr(c.dst[0], sPC), None]
    k("s_and_b32 %s, s2, 7" % sr(sTmp))
    k("s_lshr_b32 %s, s2, 3" % sr(sTmp2))
    k("s_mul_i32 %s, %s, %d" % (sr(sT), sr(sTmp), NWG // 8))
    k("s_add_u32 %s, %s, %s" % (sr(sT), sr(sT), sr(sTmp2)))
    c.decode(k, sT, sZ, sTM, sTN, sTmp, sTmp2)
    k("v_lshrrev_b32 v1, 6, v0")
    k("v_and_b32 v2, 63, v0")
    k("s_nop 0")
    k("v_readfirstlane_b32 %s, v1" % sr(sW))
    k("s_nop 3")
    k("s_lshr_b32 %s, %s, 1" % (sr(sWM), sr(sW)))
    k("s_and_b32 %s, %s, 1" % (sr(sWN), sr(sW)))
    k("s_waitcnt lgkmcnt(0)")

    def sel_ptr(pair, dst):
        (r0, o0), (r1, o1) = pair
        if (r0, o0) == (r1, o1):
            return (r0, o0)
        k("s_cmp_eq_u32 %s, 0" % sr(sZ))
        assert True
        if o0 == 0 and o1 == 0:
            k("s_cselect_b32 %s, %s, %s" % (sr(dst), sr(r0), sr(r1)))
            k("s_cselect_b32 %s, %s, %s" % (sr(dst + 1), sr(r0 + 1), sr(r1 + 1)))
            return (dst, 0)
        assert r0 == r1
        k("s_mov_b32 %s, 0x%x" % (sr(sTmp), o0))
        k("s_mov_b32 %s, 0x%x" % (sr(sTmp2), o1))
        k("s_cselect_b32 %s, %s, %s" % (sr(sTmp), sr(sTmp), sr(sTmp2)))
        k("s_add_u32 %s, %s, %s" % (sr(dst), sr(r0), sr(sTmp)))
        k("s_addc_u32 %s, %s, 0" % (sr(dst + 1), sr(r0 + 1)))
        return (dst, 0)

    pmsel = sel_ptr(pm, sPM0 if pm[0][0] != sWS else 56)
    k("s_mul_i32 %s, %s, %d" % (sr(sTmp), sr(sTM), MT))
    k("s_mul_i32 %s, %s, %d" % (sr(sTmp2), sr(sW), MT // 4))
    k("s_add_u32 %s, %s, %s" % (sr(sTmp), sr(sTmp), sr(sTmp2)))
    k("s_mul_i32 %s, %s, %d" % (sr(sTmp), sr(sTmp), c.LDM))
    build_srd(k, sSRDM, pmsel[0], c.msize, pmsel[1], dyn=sTmp)
    if c.nlayout == "NT":
        pnsel = sel_ptr(pn, sPN0 if pn[0][0] != sWS else 58)
        k("s_mul_i32 %s, %s, %d" % (sr(sTmp), sr(sTN), NTL))
        k("s_mul_i32 %s, %s, %d" % (sr(sTmp2), sr(sW), NTL // 4))
        k("s_add_u32 %s, %s, %s" % (sr(sTmp), sr(sTmp), sr(sTmp2)))
        k("s_mul_i32 %s, %s, %d" % (sr(sTmp), sr(sTmp), c.LDN))
        build_srd(k, sSRDN, pnsel[0], c.nsize, pnsel[1], dyn=sTmp)
    else:
        k("s_mul_i32 %s, %s, %d" % (sr(sTmp), sr(sW), PN))
        k("s_and_b32 %s, %s, 7" % (sr(sTmp2), sr(sTmp)))
        k("s_lshr_b32 %s, %s, 3" % (sr(sTmp), sr(sTmp)))
        k("s_mul_i32 %s, %s, %d" % (sr(sTmp2), sr(sTmp2), 8 * c.LDN))
        if c.glu:
            k("s_cmp_eq_u32 %s, 0" % sr(sTmp))
            k("s_cselect_b32 %s, %s, %s" % (sr(sPN0), sr(pn[0][0]), sr(pn[1][0])))
            k("s_cselect_b32 %s, %s, %s" % (sr(sPN0 + 1), sr(pn[0][0] + 1), sr(pn[1][0] + 1)))
            k("s_mul_i32 %s, %s, %d" % (sr(sTmp), sr(sTN), 64 * 2))
            k("s_add_u32 %s, %s, %s" % (sr(sTmp), sr(sTmp), sr(sTmp2)))
            build_srd(k, sSRDN, sPN0, c.nsize, 0, dyn=sTmp)
        else:
            k("s_mul_i32 %s, %s, %d" % (sr(sTmp), sr(sTmp), 64 * 2))
            k("s_add_u32 %s, %s, %s" % (sr(sTmp), sr(sTmp), sr(sTmp2)))
            k("s_mul_i32 %s, %s, %d" % (sr(sTmp2), sr(sTN), NTL * 2))
            k("s_add_u32 %s, %s, %s" % (sr(sTmp), sr(sTmp), sr(sTmp2)))
            build_srd(k, sSRDN, pn[0][0], c.nsize, pn[0][1], dyn=sTmp)
    pcsel = sel_ptr([pc[0], get_dst_alt(c, pc)], 60) if c.dst[0] != c.dst[1] else pc[0]
    NOUT = c.NOUT
    k("s_mul_i32 %s, %s, %d" % (sr(sTmp), sr(sTM), MT * c.LDC))
    k("s_mul_i32 %s, %s, %d" % (sr(sTmp2), sr(sTN), NOUT * 2))
    k("s_add_u32 %s, %s, %s" % (sr(sTmp), sr(sTmp), sr(sTmp2)))
    build_srd(k, sSRDC, pcsel[0], c.csize, pcsel[1], dyn=sTmp)

    k("v_lshrrev_b32 v3, 3, v2")
    k("v_and_b32 v4, 7, v2")
    k("v_lshrrev_b32 v5, 4, v2")
    k("v_mul_u32_u24 v6, 0x%x, v3" % c.LDM)
    for j in range(PM):
        if j & 1:
            k("v_or_b32 v7, 4, v5")
            k("v_xor_b32 v7, v7, v4")
        else:
            k("v_xor_b32 v7, v5, v4")
        k("v_lshl_add_u32 %s, v7, 4, v6" % vr(vDM + j))
        cst = 8 * j * c.LDM - 1024 * j
        if cst:
            k("v_add_u32 %s, 0x%x, %s" % (vr(vDM + j), cst, vr(vDM + j)))
    if c.nlayout == "NT":
        k("v_mul_u32_u24 v6, 0x%x, v3" % c.LDN)
        for j in range(PN):
            if j & 1:
                k("v_or_b32 v7, 4, v5")
                k("v_xor_b32 v7, v7, v4")
            else:
                k("v_xor_b32 v7, v5, v4")
            k("v_lshl_add_u32 %s, v7, 4, v6" % vr(vDN + j))
            cst = 8 * j * c.LDN - 1024 * j
            if cst:
                k("v_add_u32 %s, 0x%x, %s" % (vr(vDN + j), cst, vr(vDN + j)))
    else:
        k("v_and_b32 v7, 1, v5")
        k("v_lshlrev_b32 v7, 2, v7")
        k("v_xor_b32 v7, v7, v4")
        k("v_mul_u32_u24 v6, 0x%x, v3" % c.LDN)
        for j in range(PN):
            k("v_lshl_add_u32 %s, v7, 4, v6" % vr(vDN + j))
            cst = 8 * j * c.LDN - 1024 * j
            if cst:
                k("v_add_u32 %s, 0x%x, %s" % (vr(vDN + j), cst, vr(vDN + j)))
    k("v_and_b32 v8, 31, v2")
    k("v_lshrrev_b32 v9, 5, v2")
    k("v_lshrrev_b32 v10, 1, v8")
    k("v_and_b32 v10, 7, v10")
    k("v_xor_b32 v10, v10, v9")
    k("v_lshlrev_b32 v10, 4, v10")
    k("v_lshl_add_u32 v10, v8, 7, v10")
    k("s_mul_i32 %s, %s, %d" % (sr(sTmp), sr(sWM), MF * 4096))
    for kk in range(4):
        k("v_xor_b32 %s, 0x%x, v10" % (vr(vRM + kk), kk << 5))
        k("v_add_u32 %s, %s, %s" % (vr(vRM + kk), sr(sTmp), vr(vRM + kk)))
    if c.nlayout == "NT":
        k("s_mul_i32 %s, %s, %d" % (sr(sTmp), sr(sWN), NF * 4096))
        k("s_add_u32 %s, %s, 0x%x" % (sr(sTmp), sr(sTmp), NREG))
        for kk in range(4):
            k("v_xor_b32 %s, 0x%x, v10" % (vr(vRN + kk), kk << 5))
            k("v_add_u32 %s, %s, %s" % (vr(vRN + kk), sr(sTmp), vr(vRN + kk)))
    else:
        k("v_lshrrev_b32 v11, 2, v2")
        k("v_and_b32 v11, 3, v11")
        k("v_lshl_add_u32 v11, v9, 3, v11")
        k("v_and_b32 v12, 1, v5")
        k("v_lshlrev_b32 v12, 1, v12")
        k("v_lshrrev_b32 v13, 1, v2")
        k("v_and_b32 v13, 1, v13")
        k("v_add_u32 v12, v12, v13")
        k("s_lshl_b32 %s, %s, 2" % (sr(sTmp), sr(sWN)))
        k("v_add_u32 v12, %s, v12" % sr(sTmp))
        k("v_and_b32 v13, 1, v3")
        k("v_lshlrev_b32 v13, 2, v13")
        k("v_xor_b32 v12, v12, v13")
        k("v_lshlrev_b32 v12, 4, v12")
        k("v_lshl_add_u32 v12, v11, 7, v12")
        k("v_and_b32 v13, 1, v2")
        k("v_lshl_add_u32 v12, v13, 3, v12")
        k("v_add_u32 %s, 0x%x, v12" % (vr(vRN), NREG))
    for st in range(S):
        k("s_mul_i32 %s, %s, %d" % (sr(sTmp), sr(sW), MSTAGE // 4))
        k("s_add_u32 %s, %s, 0x%x" % (sr(sM0M + st), sr(sTmp), st * MSTAGE))
        k("s_mul_i32 %s, %s, %d" % (sr(sTmp), sr(sW), NSTAGE // 4))
        k("s_add_u32 %s, %s, 0x%x" % (sr(sM0N + st), sr(sTmp), NREG + st * NSTAGE))
    k("s_mov_b32 %s, 0" % sr(sKM))
    k("s_mov_b32 %s, 0" % sr(sKN))
    KSTEPM = 128
    KSTEPN = 128 if c.nlayout == "NT" else 64 * c.LDN

    def dma_piece(i, st):
        if i < PM:
            k("buffer_load_dwordx4 %s, %s, %s offen offset:%d lds" % (vr(vDM + i), sr(sSRDM, 4), sr(sKM), i * 1024))
        else:
            j = i - PM
            k("buffer_load_dwordx4 %s, %s, %s offen offset:%d lds" % (vr(vDN + j), sr(sSRDN, 4), sr(sKN), j * 1024))

    def set_m0(i, st):
        if i == 0:
            k("s_mov_b32 m0, %s" % sr(sM0M + st))
        elif i == PM:
            k("s_mov_b32 m0, %s" % sr(sM0N + st))

    def kadvance():
        k("s_add_u32 %s, %s, %d" % (sr(sKM), sr(sKM), KSTEPM))
        k("s_add_u32 %s, %s, 0x%x" % (sr(sKN), sr(sKN), KSTEPN))

    for t in range(S - 1):
        for i in range(P):
            set_m0(i, t % S)
            if i in (0, PM):
                k("s_nop 0")
            dma_piece(i, t % S)
        kadvance()
    for r in range(NACC):
        k("v_mov_b32 %s, 0" % vr(ACC + r))

    NRD = MF + (NF if c.nlayout == "NT" else 2 * NF)

    def reads(fs, st, kk):
        for mf in range(MF):
            k("ds_read_b128 %s, %s offset:%d" % (vr(fragM(fs, mf), 4), vr(vRM + kk), st * MSTAGE + mf * 4096))
        for nf in range(NF):
            if c.nlayout == "NT":
                k("ds_read_b128 %s, %s offset:%d" % (vr(fragN(fs, nf), 4), vr(vRN + kk), st * NSTAGE + nf * 4096))
            else:
                o = st * NSTAGE + nf * 8192 + kk * 2048
                k("ds_read_b64_tr_b16 %s, %s offset:%d" % (vr(fragN(fs, nf), 2), vr(vRN), o))
                k("ds_read_b64_tr_b16 %s, %s offset:%d" % (vr(fragN(fs, nf) + 2, 2), vr(vRN), o + 512))

    def mfmas(fs, dma_list, st_dma):
        dl = list(dma_list)
        n = MF * NF
        idx = 0
        for mf in range(MF):
            for nf in range(NF):
                if dl and dl[0] in (0, PM):
                    set_m0(dl[0], st_dma)
                k("v_mfma_f32_32x32x16_bf16 %s, %s, %s, %s" % (
                    vr(acc(mf, nf), 16), vr(fragN(fs, nf), 4), vr(fragM(fs, mf), 4), vr(acc(mf, nf), 16)))
                idx += 1
                rem_m = n - idx
                while dl and (len(dl) > rem_m):
                    if dl[0] in (0, PM):
                        set_m0(dl[0], st_dma)
                        k("s_nop 0")
                    dma_piece(dl.pop(0), st_dma)
        assert not dl

    def split_pieces(P):
        a = (P + 2) // 3
        b = (P - a + 1) // 2
        return [list(range(0, a)), list(range(a, a + b)), list(range(a + b, P))]

    PIECES = split_pieces(P)

    def step(st, do_dma, vm_allowed, last):
        st_next = (st + 1) % S
        st_dma = (st + S - 1) % S
        for kk in range(3):
            fs_cur = kk & 1
            fs_nxt = (kk + 1) & 1
            reads(fs_nxt, st, kk + 1)
            k("s_waitcnt lgkmcnt(%d)" % NRD)
            mfmas(fs_cur, PIECES[kk] if do_dma else [], st_dma)
        if do_dma:
            kadvance()
        if last:
            k("s_waitcnt lgkmcnt(0)")
            mfmas(1, [], st_dma)
        else:
            k("s_waitcnt vmcnt(%d) lgkmcnt(0)" % vm_allowed)
            k("s_barrier")
            reads(0, st_next, 0)
            mfmas(1, [], st_dma)

    k("s_waitcnt vmcnt(%d)" % ((S - 2) * P))
    k("s_barrier")
    reads(0, 0, 0)
    T = (nk - (S - 1)) // S
    lloop = k.newlabel("loop")
    if T > 0:
        k("s_mov_b32 %s, %d" % (sr(sLoop), T))
        k.label(lloop)
        for u in range(S):
            step(u, True, (S - 2) * P, False)
        k("s_sub_u32 %s, %s, 1" % (sr(sLoop), sr(sLoop)))
        k("s_cmp_lg_u32 %s, 0" % sr(sLoop))
        k("s_cbranch_scc1 %s" % lloop)
    for kidx in range(T * S, nk):
        do_dma = (kidx + S - 1) < nk
        allowed = min(S - 2, nk - kidx - 2) * P
        step(kidx % S, do_dma, max(allowed, 0), kidx == nk - 1)

    k("s_nop 15")
    k("s_nop 3")
    c.epilogue(k, c, locals())
    k.label(lend)
    return k, VGPRS, LDS_BYTES


def get_dst_alt(c, pc):
    src = c.dst[1]
    assert src[0] == "ws"
    return (pc[0][0], src[1])


def epi_plain(k, c, L):
    MF, NF = c.MF, c.NF
    acc, vr, sr = L["acc"], globals()["vr"], globals()["sr"]
    sWM, sWN, sTmp, sSRDC = L["sWM"], L["sWN"], L["sTmp"], L["sSRDC"]
    k("s_mul_i32 %s, %s, %d" % (sr(sTmp), sr(sWM), MF * 32))
    k("v_add_u32 v1, %s, v8" % sr(sTmp))
    k("v_mul_u32_u24 v1, 0x%x, v1" % c.LDC)
    colpart = (NF * 32) if c.nlayout == "NT" else 32
    k("s_mul_i32 %s, %s, %d" % (sr(sTmp), sr(sWN), colpart * 2))
    k("v_lshl_add_u32 v1, v9, 3, v1")
    k("v_add_u32 v1, %s, v1" % sr(sTmp))
    for mf in range(MF):
        if mf:
            k("v_add_u32 v1, 0x%x, v1" % (32 * c.LDC))
        for nf in range(NF):
            a = acc(mf, nf)
            for g in range(4):
                k("v_cvt_pk_bf16_f32 %s, %s, %s" % (vr(a + 4 * g), vr(a + 4 * g), vr(a + 4 * g + 1)))
                k("v_cvt_pk_bf16_f32 %s, %s, %s" % (vr(a + 4 * g + 1), vr(a + 4 * g + 2), vr(a + 4 * g + 3)))
                if c.nlayout == "NT":
                    off = (nf * 32 + 8 * g) * 2
                else:
                    off = (nf * 64 + 8 * g) * 2
                k("buffer_store_dwordx2 %s, v1, %s, 0 offen offset:%d" % (vr(a + 4 * g, 2), sr(sSRDC, 4), off))


def epi_glu(k, c, L):
    MF, NF = c.MF, c.NF
    assert NF == 2
    acc = L["acc"]
    sWM, sWN, sTmp, sSRDC = L["sWM"], L["sWN"], L["sTmp"], L["sSRDC"]
    FR = L["FR"]
    k("s_mul_i32 %s, %s, %d" % (sr(sTmp), sr(sWM), MF * 32))
    k("v_add_u32 v1, %s, v8" % sr(sTmp))
    k("v_mul_u32_u24 v1, 0x%x, v1" % c.LDC)
    k("s_mul_i32 %s, %s, %d" % (sr(sTmp), sr(sWN), 32 * 2))
    k("v_lshl_add_u32 v1, v9, 3, v1")
    k("v_add_u32 v1, %s, v1" % sr(sTmp))
    k("s_mov_b32 %s, 0xbfb8aa3b" % sr(sTmp))
    T0 = FR[0]
    for mf in range(MF):
        if mf:
            k("v_add_u32 v1, 0x%x, v1" % (32 * c.LDC))
        ga, ua = acc(mf, 0), acc(mf, 1)
        for g in range(4):
            t = [T0 + 8 * (g & 1) + i for i in range(8)]
            for i in range(4):
                k("v_cvt_pk_bf16_f32 %s, %s, %s" % (vr(t[i]), vr(ga + 4 * g + i), vr(ua + 4 * g + i)))
            for i in range(4):
                k("v_lshlrev_b32 %s, 16, %s" % (vr(t[4 + i]), vr(t[i])))
            for i in range(4):
                k("v_mul_f32 %s, %s, %s" % (vr(t[4 + i]), sr(sTmp), vr(t[4 + i])))
            for i in range(4):
                k("v_exp_f32 %s, %s" % (vr(t[4 + i]), vr(t[4 + i])))
            for i in range(4):
                k("v_add_f32 %s, 1.0, %s" % (vr(t[4 + i]), vr(t[4 + i])))
            for i in range(4):
                k("v_rcp_f32 %s, %s" % (vr(t[4 + i]), vr(t[4 + i])))
            for i in range(4):
                k("v_and_b32 %s, 0xffff0000, %s" % (vr(t[i]), vr(t[i])))
            k("v_cvt_pk_bf16_f32 %s, %s, %s" % (vr(t[4]), vr(t[4]), vr(t[5])))
            k("v_cvt_pk_bf16_f32 %s, %s, %s" % (vr(t[6]), vr(t[6]), vr(t[7])))
            k("v_and_b32 %s, 0xffff0000, %s" % (vr(t[5]), vr(t[4])))
            k("v_lshlrev_b32 %s, 16, %s" % (vr(t[4]), vr(t[4])))
            k("v_and_b32 %s, 0xffff0000, %s" % (vr(t[7]), vr(t[6])))
            k("v_lshlrev_b32 %s, 16, %s" % (vr(t[6]), vr(t[6])))
            for i in range(4):
                k("v_mul_f32 %s, %s, %s" % (vr(t[i]), vr(t[4 + i]), vr(t[i])))
            o = ga + 4 * g
            k("v_cvt_pk_bf16_f32 %s, %s, %s" % (vr(o), vr(t[0]), vr(t[1])))
            k("v_cvt_pk_bf16_f32 %s, %s, %s" % (vr(o + 1), vr(t[2]), vr(t[3])))
            k("buffer_store_dwordx2 %s, v1, %s, 0 offen offset:%d" % (vr(o, 2), sr(sSRDC, 4), 16 * g))


def blocked_decode(tilesM, tilesN, BMb, BNb, nbatch):
    def dec(k, sT, sZ, sTM, sTN, sTmp, sTmp2):
        lb = log2(BMb * BNb)
        nbN = tilesN // BNb
        nbM = tilesM // BMb
        lper = log2(nbN * nbM)
        k("s_and_b32 %s, %s, %d" % (sr(sTmp), sr(sT), BMb * BNb - 1))
        k("s_lshr_b32 %s, %s, %d" % (sr(sTmp2), sr(sT), lb))
        if nbatch > 1:
            k("s_lshr_b32 %s, %s, %d" % (sr(sZ), sr(sTmp2), lper))
            k("s_and_b32 %s, %s, %d" % (sr(sTmp2), sr(sTmp2), nbN * nbM - 1))
        else:
            k("s_mov_b32 %s, 0" % sr(sZ))
        k("s_lshr_b32 %s, %s, %d" % (sr(sTM), sr(sTmp2), log2(nbN)))
        k("s_and_b32 %s, %s, %d" % (sr(sTN), sr(sTmp2), nbN - 1))
        k("s_lshl_b32 %s, %s, %d" % (sr(sTM), sr(sTM), log2(BMb)))
        k("s_lshl_b32 %s, %s, %d" % (sr(sTN), sr(sTN), log2(BNb)))
        k("s_lshr_b32 %s, %s, %d" % (sr(sTmp2), sr(sTmp), log2(BNb)))
        k("s_add_u32 %s, %s, %s" % (sr(sTM), sr(sTM), sr(sTmp2)))
        k("s_and_b32 %s, %s, %d" % (sr(sTmp2), sr(sTmp), BNb - 1))
        k("s_add_u32 %s, %s, %s" % (sr(sTN), sr(sTN), sr(sTmp2)))

    return dec


def dec_g3(k, sT, sZ, sTM, sTN, sTmp, sTmp2):
    k("s_mov_b32 %s, 0" % sr(sZ))
    k("s_and_b32 %s, %s, 15" % (sr(sTM), sr(sT)))
    k("s_lshr_b32 %s, %s, 4" % (sr(sTN), sr(sT)))


def cfg_g1(S=4):
    c = GemmCfg()
    c.MF, c.NF, c.S = 2, 2, S
    c.Kdim = D_
    c.NWG = 256
    c.nlayout = "NT"
    c.glu = False
    c.msrc = [("arg", KARG["Wre"]), ("arg", KARG["Wim"])]
    c.msize, c.LDM = D_ * D_ * 2, D_ * 2
    c.nsrc = [("ws", WS["xn"]), ("ws", WS["xn"])]
    c.nsize, c.LDN = S_ * D_ * 2, D_ * 2
    c.dst = [("ws", WS["aT"]), ("ws", WS["bT"])]
    c.csize, c.LDC = D_ * S_ * 2, S_ * 2
    c.NOUT = 128
    c.decode = blocked_decode(8, 16, 4, 8, 2)
    c.epilogue = epi_plain
    return c


def cfg_g2(S=4):
    c = GemmCfg()
    c.MF, c.NF, c.S = 2, 2, S
    c.Kdim = S_
    c.NWG = 256
    c.nlayout = "NT"
    c.glu = False
    c.msrc = [("arg", KARG["Cr"]), ("arg", KARG["Ci"])]
    c.msize, c.LDM = S_ * S_ * 2, S_ * 2
    c.nsrc = [("ws", WS["aT"]), ("ws", WS["bT"])]
    c.nsize, c.LDN = D_ * S_ * 2, S_ * 2
    c.dst = [("ws", WS["P"]), ("ws", WS["Q"])]
    c.csize, c.LDC = S_ * D_ * 2, D_ * 2
    c.NOUT = 128
    c.decode = blocked_decode(16, 8, 4, 8, 2)
    c.epilogue = epi_plain
    return c


def cfg_g3(S=2):
    c = GemmCfg()
    c.MF, c.NF, c.S = 2, 2, S
    c.Kdim = D_
    c.NWG = 16 * 56
    c.nlayout = "NN"
    c.glu = True
    c.msrc = [("ws", WS["xn"]), ("ws", WS["xn"])]
    c.msize, c.LDM = S_ * D_ * 2, D_ * 2
    c.nsrc = [("arg", KARG["Wg"]), ("arg", KARG["Wu"])]
    c.nsize, c.LDN = D_ * F_ * 2, F_ * 2
    c.dst = [("ws", WS["h"]), ("ws", WS["h"])]
    c.csize, c.LDC = S_ * F_ * 2, F_ * 2
    c.NOUT = 64
    c.decode = dec_g3
    c.epilogue = epi_glu
    return c


def cfg_g4(S=4):
    c = GemmCfg()
    c.MF, c.NF, c.S = 2, 1, S
    c.Kdim = F_
    c.NWG = 256
    c.nlayout = "NN"
    c.glu = False
    c.msrc = [("ws", WS["h"]), ("ws", WS["h"])]
    c.msize, c.LDM = S_ * F_ * 2, F_ * 2
    c.nsrc = [("arg", KARG["Wd"]), ("arg", KARG["Wd"])]
    c.nsize, c.LDN = F_ * D_ * 2, D_ * 2
    c.dst = [("ws", WS["o"]), ("ws", WS["o"])]
    c.csize, c.LDC = S_ * D_ * 2, D_ * 2
    c.NOUT = 64
    c.decode = blocked_decode(16, 16, 4, 8, 1)
    c.epilogue = epi_plain
    return c


def gen_ln(name, mode):
    k = K(name)
    lend = k.newlabel("end")
    k("s_cmp_ge_u32 s2, 512")
    k("s_cbranch_scc1 %s" % lend)
    sWS, sAX, sOUT = 20, 22, 24
    load_ptr(k, sWS, KARG["ws"])
    if mode == "first":
        load_ptr(k, sAX, KARG["Ax"])
    if mode == "final":
        load_ptr(k, sOUT, KARG["out"])
    k("s_lshl_b32 s3, s2, 13")
    k("v_lshlrev_b32 v1, 4, v0")
    k("v_lshrrev_b32 v2, 6, v0")
    k("v_lshl_add_u32 v1, v2, 10, v1")
    k("s_waitcnt lgkmcnt(0)")
    SZ = S_ * D_ * 2
    sX, sA, sB, sO = 4, 8, 12, 16
    if mode == "first":
        build_srd(k, sX, sAX, SZ)
    else:
        build_srd(k, sX, sWS, SZ, WS["x"])
    if mode == "pq":
        build_srd(k, sA, sWS, SZ, WS["P"])
        build_srd(k, sB, sWS, SZ, WS["Q"])
    elif mode in ("o", "final"):
        build_srd(k, sA, sWS, SZ, WS["o"])
    X = 4
    k("buffer_load_dwordx4 %s, v1, %s, s3 offen" % (vr(X, 4), sr(sX, 4)))
    k("buffer_load_dwordx4 %s, v1, %s, s3 offen offset:1024" % (vr(X + 4, 4), sr(sX, 4)))
    A, B = 12, 20
    if mode == "pq":
        k("buffer_load_dwordx4 %s, v1, %s, s3 offen" % (vr(A, 4), sr(sA, 4)))
        k("buffer_load_dwordx4 %s, v1, %s, s3 offen offset:1024" % (vr(A + 4, 4), sr(sA, 4)))
        k("buffer_load_dwordx4 %s, v1, %s, s3 offen" % (vr(B, 4), sr(sB, 4)))
        k("buffer_load_dwordx4 %s, v1, %s, s3 offen offset:1024" % (vr(B + 4, 4), sr(sB, 4)))
    elif mode in ("o", "final"):
        k("buffer_load_dwordx4 %s, v1, %s, s3 offen" % (vr(A, 4), sr(sA, 4)))
        k("buffer_load_dwordx4 %s, v1, %s, s3 offen offset:1024" % (vr(A + 4, 4), sr(sA, 4)))
    k("s_mov_b32 s30, 0xffff0000")
    if mode != "final":
        build_srd(k, 32, sWS, SZ, WS["x"])
        build_srd(k, 36, sWS, SZ, WS["xn"])
    else:
        build_srd(k, 32, sOUT, SZ)
    k("s_waitcnt vmcnt(0)")
    F = 32
    T = 48
    if mode == "first":
        pass
    else:
        for d in range(8):
            if mode == "pq":
                k("v_lshlrev_b32 %s, 16, %s" % (vr(T), vr(A + d)))
                k("v_lshlrev_b32 %s, 16, %s" % (vr(T + 1), vr(B + d)))
                k("v_and_b32 %s, s30, %s" % (vr(T + 2), vr(A + d)))
                k("v_and_b32 %s, s30, %s" % (vr(T + 3), vr(B + d)))
                k("v_sub_f32 %s, %s, %s" % (vr(T), vr(T), vr(T + 1)))
                k("v_sub_f32 %s, %s, %s" % (vr(T + 2), vr(T + 2), vr(T + 3)))
                k("v_cvt_pk_bf16_f32 %s, %s, %s" % (vr(A + d), vr(T), vr(T + 2)))
            k("v_lshlrev_b32 %s, 16, %s" % (vr(T), vr(X + d)))
            k("v_lshlrev_b32 %s, 16, %s" % (vr(T + 1), vr(A + d)))
            k("v_and_b32 %s, s30, %s" % (vr(T + 2), vr(X + d)))
            k("v_and_b32 %s, s30, %s" % (vr(T + 3), vr(A + d)))
            k("v_add_f32 %s, %s, %s" % (vr(T), vr(T), vr(T + 1)))
            k("v_add_f32 %s, %s, %s" % (vr(T + 2), vr(T + 2), vr(T + 3)))
            k("v_cvt_pk_bf16_f32 %s, %s, %s" % (vr(X + d), vr(T), vr(T + 2)))
    k("buffer_store_dwordx4 %s, v1, s[32:35], s3 offen" % vr(X, 4))
    k("buffer_store_dwordx4 %s, v1, s[32:35], s3 offen offset:1024" % vr(X + 4, 4))
    if mode == "final":
        k.label(lend)
        return k, 64
    for d in range(8):
        k("v_lshlrev_b32 %s, 16, %s" % (vr(F + 2 * d), vr(X + d)))
        k("v_and_b32 %s, s30, %s" % (vr(F + 2 * d + 1), vr(X + d)))

    def wave_reduce(v, tmp):
        k("s_nop 1")
        k("v_add_f32_dpp %s, %s, %s quad_perm:[1,0,3,2] row_mask:0xf bank_mask:0xf" % (vr(v), vr(v), vr(v)))
        k("s_nop 1")
        k("v_add_f32_dpp %s, %s, %s quad_perm:[2,3,0,1] row_mask:0xf bank_mask:0xf" % (vr(v), vr(v), vr(v)))
        k("s_nop 1")
        k("v_add_f32_dpp %s, %s, %s row_half_mirror row_mask:0xf bank_mask:0xf" % (vr(v), vr(v), vr(v)))
        k("s_nop 1")
        k("v_add_f32_dpp %s, %s, %s row_mirror row_mask:0xf bank_mask:0xf" % (vr(v), vr(v), vr(v)))
        k("s_nop 1")
        k("v_readlane_b32 s40, %s, 0" % vr(v))
        k("v_readlane_b32 s41, %s, 16" % vr(v))
        k("v_readlane_b32 s42, %s, 32" % vr(v))
        k("v_readlane_b32 s43, %s, 48" % vr(v))
        k("s_nop 3")
        k("v_mov_b32 %s, s40" % vr(v))
        k("v_add_f32 %s, s41, %s" % (vr(v), vr(v)))
        k("v_add_f32 %s, s42, %s" % (vr(v), vr(v)))
        k("v_add_f32 %s, s43, %s" % (vr(v), vr(v)))

    SUM = 56
    k("v_add_f32 %s, %s, %s" % (vr(SUM), vr(F), vr(F + 1)))
    for i in range(2, 16):
        k("v_add_f32 %s, %s, %s" % (vr(SUM), vr(SUM), vr(F + i)))
    wave_reduce(SUM, None)
    k("v_mul_f32 %s, 0x3a800000, %s" % (vr(SUM), vr(SUM)))
    SQ = 57
    k("v_sub_f32 %s, %s, %s" % (vr(T), vr(F), vr(SUM)))
    k("v_mul_f32 %s, %s, %s" % (vr(SQ), vr(T), vr(T)))
    for i in range(1, 16):
        k("v_sub_f32 %s, %s, %s" % (vr(T), vr(F + i), vr(SUM)))
        k("v_fmac_f32 %s, %s, %s" % (vr(SQ), vr(T), vr(T)))
    wave_reduce(SQ, None)
    k("v_mul_f32 %s, 0x3a800000, %s" % (vr(SQ), vr(SQ)))
    k("v_cvt_pk_bf16_f32 %s, %s, %s" % (vr(SUM), vr(SUM), vr(SQ)))
    k("v_and_b32 %s, s30, %s" % (vr(SQ), vr(SUM)))
    k("v_lshlrev_b32 %s, 16, %s" % (vr(SUM), vr(SUM)))
    k("v_add_f32 %s, 0x3727c5ac, %s" % (vr(SQ), vr(SQ)))
    k("v_cvt_pk_bf16_f32 %s, %s, %s" % (vr(SQ), vr(SQ), vr(SQ)))
    k("v_lshlrev_b32 %s, 16, %s" % (vr(SQ), vr(SQ)))
    k("v_sqrt_f32 %s, %s" % (vr(SQ), vr(SQ)))
    k("s_nop 0")
    k("v_cvt_pk_bf16_f32 %s, %s, %s" % (vr(SQ), vr(SQ), vr(SQ)))
    k("v_lshlrev_b32 %s, 16, %s" % (vr(SQ), vr(SQ)))
    RC = 58
    k("v_rcp_f32 %s, %s" % (vr(RC), vr(SQ)))
    for d in range(8):
        k("v_sub_f32 %s, %s, %s" % (vr(F + 2 * d), vr(F + 2 * d), vr(SUM)))
        k("v_sub_f32 %s, %s, %s" % (vr(F + 2 * d + 1), vr(F + 2 * d + 1), vr(SUM)))
        k("v_cvt_pk_bf16_f32 %s, %s, %s" % (vr(T), vr(F + 2 * d), vr(F + 2 * d + 1)))
        k("v_lshlrev_b32 %s, 16, %s" % (vr(F + 2 * d), vr(T)))
        k("v_and_b32 %s, s30, %s" % (vr(F + 2 * d + 1), vr(T)))
    for i in range(16):
        f = F + i
        t0, t1 = T + 2 * (i % 4), T + 2 * (i % 4) + 1
        k("v_mul_f32 %s, %s, %s" % (vr(t0), vr(f), vr(RC)))
        k("v_fma_f32 %s, -%s, %s, %s" % (vr(t1), vr(t0), vr(SQ), vr(f)))
        k("v_fma_f32 %s, %s, %s, %s" % (vr(f), vr(t1), vr(RC), vr(t0)))
    for d in range(8):
        k("v_cvt_pk_bf16_f32 %s, %s, %s" % (vr(X + d), vr(F + 2 * d), vr(F + 2 * d + 1)))
    k("buffer_store_dwordx4 %s, v1, s[36:39], s3 offen" % vr(X, 4))
    k("buffer_store_dwordx4 %s, v1, s[36:39], s3 offen offset:1024" % vr(X + 4, 4))
    k.label(lend)
    return k, 64


def build(opts=None):
    opts = opts or {}
    pre = "il_"
    kernels = []
    launches = []

    def add(k, vgprs, grid, block, lds):
        kernels.append((k, vgprs))
        return (k.name, grid, block, lds)

    ln_first, v = gen_ln(pre + "ln_first_kernel", "first")
    L_ln_first = add(ln_first, v, 512, 256, 0)
    ln_pq, v = gen_ln(pre + "ln_pq_kernel", "pq")
    L_ln_pq = add(ln_pq, v, 512, 256, 0)
    ln_o, v = gen_ln(pre + "ln_o_kernel", "o")
    L_ln_o = add(ln_o, v, 512, 256, 0)
    ln_fin, v = gen_ln(pre + "ln_final_kernel", "final")
    L_fin = add(ln_fin, v, 512, 256, 0)
    gl = []
    for nm, cfg in (("g1", cfg_g1()), ("g2", cfg_g2()), ("g3", cfg_g3(opts.get("S3", 2))), ("g4", cfg_g4())):
        k, v, lds = gen_gemm(pre + nm + "_kernel", cfg)
        gl.append(add(k, v, cfg.NWG, 256, lds))
    G1, G2, G3, G4 = gl
    seq = [L_ln_first, G1, G2, L_ln_pq, G3, G4, L_ln_o, G1, G2, L_ln_pq, G3, G4, L_fin]
    if "upto" in opts:
        seq = seq[: opts["upto"]]
    out = [HEADER]
    for (nm, grid, block, lds) in seq:
        out.append("; @launch kernel=%s grid=(%d,1,1) block=(%d,1,1) lds=%d\n" % (nm, grid, block, lds))
    out.append('.amdgcn_target "amdgcn-amd-amdhsa--gfx950"\n.text\n')
    for k, v in kernels:
        out.append(k.text(v))
    out.append('.section .rodata,"a"\n.p2align 6\n')
    for k, v in kernels:
        out.append(".p2align 6\n" + k.desc(v))
    return "".join(out)


if __name__ == "__main__":
    dst = sys.argv[1] if len(sys.argv) > 1 else "interleave_layers__spectral_fnet__glu_gated_glu__prompt.s"
    open(dst, "w").write(build())
    print("written", dst)
```

```python
import sys, math

S_, D_, F_ = 2048, 1024, 3584
MB = 1 << 20
KARG = dict(Ax=0, Cr=1, Ci=2, Wre=3, Wim=4, Bx=5, Wg=6, Wu=7, Wd=8, out=9, dbg=10, ws=11)
WS = dict(x=0, xn=4 * MB, aT=8 * MB, bT=12 * MB, P=16 * MB, Q=20 * MB, h=24 * MB, o=40 * MB, o32=40 * MB)

HEADER = """; Kernarg layout for this problem (96 bytes, ptrs only, base s[0:1]):
"""


def log2(x):
    l = int(math.log2(x))
    assert (1 << l) == x, x
    return l


class K:
    def __init__(self, name):
        self.name = name
        self.L = []
        self.nlabel = 0

    def __call__(self, s):
        self.L.append("    " + s)

    def c(self, s):
        self.L.append("    ; " + s)

    def label(self, l):
        self.L.append(l + ":")

    def newlabel(self, p="L"):
        self.nlabel += 1
        return "%s_%s_%d" % (self.name, p, self.nlabel)

    def text(self, vgprs, sgprs=102):
        out = [".globl %s" % self.name, ".p2align 8", ".type %s,@function" % self.name, self.name + ":"]
        out += self.L
        out.append("    s_endpgm")
        return "\n".join(out) + "\n"

    def desc(self, vgprs, sgprs=102):
        acc = (vgprs + 3) // 4 * 4
        return """.amdhsa_kernel %s
  .amdhsa_next_free_vgpr %d
  .amdhsa_next_free_sgpr %d
  .amdhsa_accum_offset %d
  .amdhsa_group_segment_fixed_size 0
  .amdhsa_kernarg_size 96
  .amdhsa_user_sgpr_count 2
  .amdhsa_user_sgpr_kernarg_segment_ptr 1
  .amdhsa_system_sgpr_workgroup_id_x 1
.end_amdhsa_kernel
""" % (self.name, vgprs, sgprs, acc)


def vr(b, n=1):
    return "v%d" % b if n == 1 else "v[%d:%d]" % (b, b + n - 1)


def sr(b, n=1):
    return "s%d" % b if n == 1 else "s[%d:%d]" % (b, b + n - 1)


def load_ptr(k, sdst, slot):
    k("s_load_dwordx2 %s, s[0:1], %d" % (sr(sdst, 2), slot * 8))


def build_srd(k, d, ptr, size, const_off=0, dyn=None):
    if dyn is not None:
        k("s_add_u32 %s, %s, %s" % (sr(d), sr(ptr), sr(dyn)))
        k("s_addc_u32 %s, %s, 0" % (sr(d + 1), sr(ptr + 1)))
        if const_off:
            k("s_add_u32 %s, %s, 0x%x" % (sr(d), sr(d), const_off))
            k("s_addc_u32 %s, %s, 0" % (sr(d + 1), sr(d + 1)))
        k("s_sub_u32 %s, 0x%x, %s" % (sr(d + 2), size, sr(dyn)))
    else:
        if const_off:
            k("s_add_u32 %s, %s, 0x%x" % (sr(d), sr(ptr), const_off))
            k("s_addc_u32 %s, %s, 0" % (sr(d + 1), sr(ptr + 1)))
        else:
            k("s_mov_b32 %s, %s" % (sr(d), sr(ptr)))
            k("s_mov_b32 %s, %s" % (sr(d + 1), sr(ptr + 1)))
        k("s_mov_b32 %s, 0x%x" % (sr(d + 2), size))
    k("s_and_b32 %s, %s, 0xffff" % (sr(d + 1), sr(d + 1)))
    k("s_mov_b32 %s, 0x20000" % sr(d + 3))
```

```python
from common import *


class LdsQ:
    def __init__(self):
        self.q = []

    def push(self, tag):
        self.q.append(tag)

    def wait_for(self, k, tags):
        last = -1
        for i, t in enumerate(self.q):
            if t in tags:
                last = i
        if last < 0:
            return
        n = len(self.q) - 1 - last
        k("s_waitcnt lgkmcnt(%d)" % n)
        self.q = self.q[last + 1:]

    def wait_all(self):
        self.q = []


def gen_gemm(name, c):
    k = K(name)
    WM, WN, MF, NF, S = c.WM, c.WN, c.MF, c.NF, c.S
    NW = WM * WN
    MT = WM * MF * 32
    NTL = WN * NF * 32
    nk = c.Kdim // 64
    MSTAGE = MT * 128
    NSTAGE = NTL * 128
    NREG = S * MSTAGE
    LDS_BYTES = S * (MSTAGE + NSTAGE)
    PM = MSTAGE // 1024 // NW
    PN = NSTAGE // 1024 // NW
    P = PM + PN
    assert 1 <= PM <= 4 and 1 <= PN <= 4
    NWG = c.NWG
    NT = c.nlayout == "NT"
    LA = getattr(c, "LA", 2)
    NS = 4 if LA == 2 else 2
    nomfma = getattr(c, "nomfma", False)
    nodma = getattr(c, "nodma", False)

    sSRDM, sSRDN, sSRDC = 4, 8, 12
    sT, sTM, sTN, sZ, sW, sWM, sWN = 16, 17, 18, 19, 20, 21, 22
    sTmp, sTmp2 = 23, 3
    sPM0, sPM1, sPN0, sPN1, sPC = 24, 26, 28, 30, 32
    sKM, sKN, sLoop = 34, 35, 36
    sWS = 38
    sM0M, sM0N = 40, 48
    vDM = 16
    vDN = 20
    vRM = 24
    vRN = 28
    FRB = 32
    FSZ = (MF + NF) * 4
    FR = [FRB + i * FSZ for i in range(NS)]
    ACC = FRB + NS * FSZ
    ACC = (ACC + 3) // 4 * 4
    NACC = MF * NF * 16
    VGPRS = ACC + NACC
    assert VGPRS <= 256, VGPRS

    def fragM(fs, mf):
        return FR[fs] + mf * 4

    def fragN(fs, nf):
        return FR[fs] + MF * 4 + nf * 4

    def acc(mf, nf):
        return ACC + (mf * NF + nf) * 16

    lend = k.newlabel("end")
    k("s_cmp_ge_u32 s2, %d" % NWG)
    k("s_cbranch_scc1 %s" % lend)
    STAMP = getattr(c, "stamp", False)
    if STAMP:
        k("s_memtime s[80:81]")
        k("s_memrealtime s[82:83]")
    srcs = [c.msrc[0], c.msrc[1], c.nsrc[0], c.nsrc[1], c.dst[0], c.dst[1]]
    if any(s[0] == "ws" for s in srcs):
        load_ptr(k, sWS, KARG["ws"])

    loaded = {}

    def get_ptr(src, sreg):
        if src[0] == "arg":
            off = src[2] if len(src) > 2 else 0
            if src[1] in loaded:
                return (loaded[src[1]], off)
            load_ptr(k, sreg, src[1])
            loaded[src[1]] = sreg
            return (sreg, off)
        return (sWS, src[1])

    pm = [get_ptr(c.msrc[0], sPM0), get_ptr(c.msrc[1], sPM1)]
    pn = [get_ptr(c.nsrc[0], sPN0), get_ptr(c.nsrc[1], sPN1)]
    pc = [get_ptr(c.dst[0], sPC), None]
    if c.dst[1] != c.dst[0]:
        assert c.dst[1][0] == "ws" and c.dst[0][0] == "ws"
        pc[1] = (sWS, c.dst[1][1])
    else:
        pc[1] = pc[0]
    k("s_and_b32 %s, s2, 7" % sr(sTmp))
    k("s_lshr_b32 %s, s2, 3" % sr(sTmp2))
    k("s_mul_i32 %s, %s, %d" % (sr(sT), sr(sTmp), NWG // 8))
    k("s_add_u32 %s, %s, %s" % (sr(sT), sr(sT), sr(sTmp2)))
    c.decode(k, sT, sZ, sTM, sTN, sTmp, sTmp2)
    if getattr(c, "sametile", False):
        k("s_mov_b32 %s, 0" % sr(sTM))
        k("s_mov_b32 %s, 0" % sr(sTN))
        k("s_mov_b32 %s, 0" % sr(sZ))
    k("v_lshrrev_b32 v1, 6, v0")
    k("v_and_b32 v2, 63, v0")
    k("s_nop 0")
    k("v_readfirstlane_b32 %s, v1" % sr(sW))
    k("s_nop 3")
    k("s_lshr_b32 %s, %s, %d" % (sr(sWM), sr(sW), log2(WN)))
    k("s_and_b32 %s, %s, %d" % (sr(sWN), sr(sW), WN - 1))
    k("s_waitcnt lgkmcnt(0)")

    def sel_ptr(pair, dst):
        (r0, o0), (r1, o1) = pair
        if (r0, o0) == (r1, o1):
            return (r0, o0)
        k("s_cmp_eq_u32 %s, 0" % sr(sZ))
        if o0 == 0 and o1 == 0:
            k("s_cselect_b32 %s, %s, %s" % (sr(dst), sr(r0), sr(r1)))
            k("s_cselect_b32 %s, %s, %s" % (sr(dst + 1), sr(r0 + 1), sr(r1 + 1)))
            return (dst, 0)
        assert r0 == r1
        k("s_mov_b32 %s, 0x%x" % (sr(sTmp), o0))
        k("s_mov_b32 %s, 0x%x" % (sr(sTmp2), o1))
        k("s_cselect_b32 %s, %s, %s" % (sr(sTmp), sr(sTmp), sr(sTmp2)))
        k("s_add_u32 %s, %s, %s" % (sr(dst), sr(r0), sr(sTmp)))
        k("s_addc_u32 %s, %s, 0" % (sr(dst + 1), sr(r0 + 1)))
        return (dst, 0)

    pmsel = sel_ptr(pm, sPM0 if pm[0][0] != sWS else 56)
    k("s_mul_i32 %s, %s, %d" % (sr(sTmp), sr(sTM), MT))
    k("s_mul_i32 %s, %s, %d" % (sr(sTmp2), sr(sW), MT // NW))
    k("s_add_u32 %s, %s, %s" % (sr(sTmp), sr(sTmp), sr(sTmp2)))
    k("s_mul_i32 %s, %s, %d" % (sr(sTmp), sr(sTmp), c.LDM))
    build_srd(k, sSRDM, pmsel[0], c.msize, pmsel[1], dyn=sTmp)
    if NT:
        pnsel = sel_ptr(pn, sPN0 if pn[0][0] != sWS else 58)
        k("s_mul_i32 %s, %s, %d" % (sr(sTmp), sr(sTN), NTL))
        k("s_mul_i32 %s, %s, %d" % (sr(sTmp2), sr(sW), NTL // NW))
        k("s_add_u32 %s, %s, %s" % (sr(sTmp), sr(sTmp), sr(sTmp2)))
        k("s_mul_i32 %s, %s, %d" % (sr(sTmp), sr(sTmp), c.LDN))
        build_srd(k, sSRDN, pnsel[0], c.nsize, pnsel[1], dyn=sTmp)
    else:
        k("s_mul_i32 %s, %s, %d" % (sr(sTmp), sr(sW), PN))
        k("s_and_b32 %s, %s, 7" % (sr(sTmp2), sr(sTmp)))
        k("s_lshr_b32 %s, %s, 3" % (sr(sTmp), sr(sTmp)))
        k("s_mul_i32 %s, %s, %d" % (sr(sTmp2), sr(sTmp2), 8 * c.LDN))
        if c.glu:
            NSUB = NTL // 64
            HS = NSUB // 2
            k("s_cmp_lt_u32 %s, %d" % (sr(sTmp), HS))
            k("s_cselect_b32 %s, %s, %s" % (sr(sPN0), sr(pn[0][0]), sr(pn[1][0])))
            k("s_cselect_b32 %s, %s, %s" % (sr(sPN0 + 1), sr(pn[0][0] + 1), sr(pn[1][0] + 1)))
            k("s_and_b32 %s, %s, %d" % (sr(sTmp), sr(sTmp), HS - 1))
            k("s_mul_i32 %s, %s, %d" % (sr(sTmp), sr(sTmp), 64 * 2))
            k("s_add_u32 %s, %s, %s" % (sr(sTmp), sr(sTmp), sr(sTmp2)))
            k("s_mul_i32 %s, %s, %d" % (sr(sTmp2), sr(sTN), NTL))
            k("s_add_u32 %s, %s, %s" % (sr(sTmp), sr(sTmp), sr(sTmp2)))
            build_srd(k, sSRDN, sPN0, c.nsize, 0, dyn=sTmp)
        else:
            k("s_mul_i32 %s, %s, %d" % (sr(sTmp), sr(sTmp), 64 * 2))
            k("s_add_u32 %s, %s, %s" % (sr(sTmp), sr(sTmp), sr(sTmp2)))
            k("s_mul_i32 %s, %s, %d" % (sr(sTmp2), sr(sTN), NTL * 2))
            k("s_add_u32 %s, %s, %s" % (sr(sTmp), sr(sTmp), sr(sTmp2)))
            k("s_mov_b32 s62, %s" % sr(sTmp))
            pnsel = sel_ptr(pn, 58)
            build_srd(k, sSRDN, pnsel[0], c.nsize, pnsel[1], dyn=62)
    pcsel = sel_ptr(pc, 60)
    NOUT = c.NOUT
    k("s_mul_i32 %s, %s, %d" % (sr(sTmp), sr(sTM), MT * c.LDC))
    k("s_mul_i32 %s, %s, %d" % (sr(sTmp2), sr(sTN), NOUT * getattr(c, "OB", 2)))
    k("s_add_u32 %s, %s, %s" % (sr(sTmp), sr(sTmp), sr(sTmp2)))
    build_srd(k, sSRDC, pcsel[0], c.csize, pcsel[1], dyn=sTmp)

    k("v_lshrrev_b32 v3, 3, v2")
    k("v_and_b32 v4, 7, v2")
    k("v_lshrrev_b32 v5, 4, v2")

    def nt_voffs(base, npieces, LD):
        k("v_mul_u32_u24 v6, 0x%x, v3" % LD)
        for j in range(npieces):
            if j & 1:
                k("v_or_b32 v7, 4, v5")
                k("v_xor_b32 v7, v7, v4")
            else:
                k("v_xor_b32 v7, v5, v4")
            k("v_lshl_add_u32 %s, v7, 4, v6" % vr(base + j))
            cst = 8 * j * LD - 1024 * j
            if cst:
                k("v_add_u32 %s, 0x%x, %s" % (vr(base + j), cst, vr(base + j)))

    nt_voffs(vDM, PM, c.LDM)
    if NT:
        nt_voffs(vDN, PN, c.LDN)
    else:
        k("v_and_b32 v7, 1, v5")
        k("v_lshlrev_b32 v7, 2, v7")
        k("v_xor_b32 v7, v7, v4")
        k("v_mul_u32_u24 v6, 0x%x, v3" % c.LDN)
        for j in range(PN):
            k("v_lshl_add_u32 %s, v7, 4, v6" % vr(vDN + j))
            cst = 8 * j * c.LDN - 1024 * j
            if cst:
                k("v_add_u32 %s, 0x%x, %s" % (vr(vDN + j), cst, vr(vDN + j)))
    k("v_and_b32 v8, 31, v2")
    k("v_lshrrev_b32 v9, 5, v2")
    k("v_lshrrev_b32 v10, 1, v8")
    k("v_and_b32 v10, 7, v10")
    k("v_xor_b32 v10, v10, v9")
    k("v_lshlrev_b32 v10, 4, v10")
    k("v_lshl_add_u32 v10, v8, 7, v10")
    k("s_mul_i32 %s, %s, %d" % (sr(sTmp), sr(sWM), MF * 4096))
    for kk in range(4):
        k("v_xor_b32 %s, 0x%x, v10" % (vr(vRM + kk), kk << 5))
        k("v_add_u32 %s, %s, %s" % (vr(vRM + kk), sr(sTmp), vr(vRM + kk)))
    if NT:
        k("s_mul_i32 %s, %s, %d" % (sr(sTmp), sr(sWN), NF * 4096))
        k("s_add_u32 %s, %s, 0x%x" % (sr(sTmp), sr(sTmp), NREG))
        for kk in range(4):
            k("v_xor_b32 %s, 0x%x, v10" % (vr(vRN + kk), kk << 5))
            k("v_add_u32 %s, %s, %s" % (vr(vRN + kk), sr(sTmp), vr(vRN + kk)))
    else:
        k("v_lshrrev_b32 v11, 2, v2")
        k("v_and_b32 v11, 3, v11")
        k("v_lshl_add_u32 v11, v9, 3, v11")
        k("v_and_b32 v12, 1, v5")
        k("v_lshlrev_b32 v12, 1, v12")
        k("v_lshrrev_b32 v13, 1, v2")
        k("v_and_b32 v13, 1, v13")
        k("v_add_u32 v12, v12, v13")
        k("v_and_b32 v13, 1, v3")
        k("v_lshlrev_b32 v13, 2, v13")
        k("v_and_b32 v14, 1, v2")
        nh = NF // 2 if c.glu else NF
        for i in range(NF):
            ii = i % nh if c.glu else i
            k("s_mul_i32 %s, %s, %d" % (sr(sTmp), sr(sWN), nh))
            k("s_add_u32 %s, %s, %d" % (sr(sTmp), sr(sTmp), ii))
            k("s_and_b32 %s, %s, 1" % (sr(sTmp2), sr(sTmp)))
            k("s_lshl_b32 %s, %s, 2" % (sr(sTmp2), sr(sTmp2)))
            k("v_add_u32 v15, %s, v12" % sr(sTmp2))
            k("v_xor_b32 v15, v15, v13")
            k("v_lshlrev_b32 v15, 4, v15")
            k("v_lshl_add_u32 v15, v11, 7, v15")
            k("v_lshl_add_u32 v15, v14, 3, v15")
            k("s_lshr_b32 %s, %s, 1" % (sr(sTmp), sr(sTmp)))
            k("s_lshl_b32 %s, %s, 13" % (sr(sTmp), sr(sTmp)))
            upoff = (NTL // 64 // 2) * 8192 if (c.glu and i >= nh) else 0
            k("s_add_u32 %s, %s, 0x%x" % (sr(sTmp), sr(sTmp), NREG + upoff))
            k("v_add_u32 %s, %s, v15" % (vr(vRN + i), sr(sTmp)))
    for st in range(S):
        k("s_mul_i32 %s, %s, %d" % (sr(sTmp), sr(sW), MSTAGE // NW))
        k("s_add_u32 %s, %s, 0x%x" % (sr(sM0M + st), sr(sTmp), st * MSTAGE))
        k("s_mul_i32 %s, %s, %d" % (sr(sTmp), sr(sW), NSTAGE // NW))
        k("s_add_u32 %s, %s, 0x%x" % (sr(sM0N + st), sr(sTmp), NREG + st * NSTAGE))
    k("s_mov_b32 %s, 0" % sr(sKM))
    k("s_mov_b32 %s, 0" % sr(sKN))
    KSTEPM = 128
    KSTEPN = 128 if NT else 64 * c.LDN

    def dma_piece(i, st):
        if nodma:
            return
        if i == 0:
            k("s_mov_b32 m0, %s" % sr(sM0M + st))
            k("s_nop 0")
        elif i == PM:
            k("s_mov_b32 m0, %s" % sr(sM0N + st))
            k("s_nop 0")
        if i < PM:
            k("buffer_load_dwordx4 %s, %s, %s offen offset:%d lds" % (vr(vDM + i), sr(sSRDM, 4), sr(sKM), i * 1024))
        else:
            j = i - PM
            k("buffer_load_dwordx4 %s, %s, %s offen offset:%d lds" % (vr(vDN + j), sr(sSRDN, 4), sr(sKN), j * 1024))

    def kadvance():
        k("s_add_u32 %s, %s, %d" % (sr(sKM), sr(sKM), KSTEPM))
        k("s_add_u32 %s, %s, 0x%x" % (sr(sKN), sr(sKN), KSTEPN))

    for t in range(S - 1):
        for i in range(P):
            dma_piece(i, t % S)
        kadvance()
    for r in range(NACC):
        k("v_mov_b32 %s, 0" % vr(ACC + r))

    q = LdsQ()

    def read_ops(st, kk):
        fs = kk % NS
        ops = []
        for mf in range(MF):
            ops.append("ds_read_b128 %s, %s offset:%d" % (vr(fragM(fs, mf), 4), vr(vRM + kk), st * MSTAGE + mf * 4096))
        for nf in range(NF):
            if NT:
                ops.append("ds_read_b128 %s, %s offset:%d" % (vr(fragN(fs, nf), 4), vr(vRN + kk), st * NSTAGE + nf * 4096))
            else:
                o = st * NSTAGE + kk * 2048
                ops.append("ds_read_b64_tr_b16 %s, %s offset:%d" % (vr(fragN(fs, nf), 2), vr(vRN + nf), o))
                ops.append("ds_read_b64_tr_b16 %s, %s offset:%d" % (vr(fragN(fs, nf) + 2, 2), vr(vRN + nf), o + 512))
        for o in ops:
            off = int(o.rsplit(":", 1)[1])
            assert off < 65536, o
        return [(o, ("r", kk)) for o in ops]

    def emit_filler(f):
        kind, payload = f
        if kind == "rd":
            if not nomfma:
                k(payload[0])
                q.push(payload[1])
        elif kind == "dma":
            dma_piece(payload[0], payload[1])
        elif kind == "txt":
            k(payload)

    def substep(kk, fillers):
        fs = kk % NS
        nm = MF * NF
        nf_ = len(fillers)
        idx = 0
        done = 0
        for mf in range(MF):
            for nf in range(NF):
                if not nomfma:
                    k("v_mfma_f32_32x32x16_bf16 %s, %s, %s, %s" % (
                        vr(acc(mf, nf), 16), vr(fragN(fs, nf), 4), vr(fragM(fs, mf), 4), vr(acc(mf, nf), 16)))
                idx += 1
                upto = (nf_ * idx + nm - 1) // nm
                while done < upto:
                    emit_filler(fillers[done])
                    done += 1
        assert done == nf_

    dma_split = getattr(c, "dma_split", None)

    def plan_dma(P):
        if dma_split is not None:
            out = []
            at = 0
            for n in dma_split:
                out.append(list(range(at, at + n)))
                at += n
            assert at == P
            return out
        if S == 2:
            a = (P + 1) // 2
            return [list(range(0, a)), list(range(a, P)), []]
        if LA == 2:
            a = P // 4
            b = P // 4
            cc = P - a - b
            return [list(range(0, a)), list(range(a, a + b)), list(range(a + b, P))]
        a = (P + 2) // 3
        b = (P - a + 1) // 2
        return [list(range(0, a)), list(range(a, a + b)), list(range(a + b, P))]

    PD = plan_dma(P)

    def interleave(a, b):
        out = []
        la, lb = len(a), len(b)
        n = max(la, lb)
        ia = ib = 0
        for i in range(la + lb):
            if ib >= lb or (ia < la and ia * lb <= ib * la):
                out.append(a[ia]);
                ia += 1
            else:
                out.append(b[ib]);
                ib += 1
        return out

    def step(st, do_dma, vm_allowed, last):
        st_next = (st + 1) % S
        st_dma = (st + S - 1) % S
        for kk in range(3):
            q.wait_for(k, [("r", kk)])
            rd = []
            if kk + LA <= 3:
                rd = [("rd", o) for o in read_ops(st, kk + LA)]
            dm = [("dma", (i, st_dma)) for i in PD[kk]] if do_dma else []
            substep(kk, interleave(rd, dm))
        if do_dma:
            kadvance()
        if last:
            q.wait_for(k, [("r", 3)])
            substep(3, [])
        else:
            q.wait_for(k, [("r", 3)])
            q.wait_all()
            if getattr(c, "novmwait", False):
                k("s_waitcnt lgkmcnt(0)")
            else:
                k("s_waitcnt vmcnt(%d) lgkmcnt(0)" % vm_allowed)
            k("s_barrier")
            rd = []
            for j in range(LA):
                rd += [("rd", o) for o in read_ops(st_next, j)]
            substep(3, rd)

    k("s_waitcnt vmcnt(%d)" % ((S - 2) * P))
    k("s_barrier")
    if STAMP:
        k("s_memtime s[84:85]")
        k("s_waitcnt lgkmcnt(0)")
    for j in range(LA):
        for o in read_ops(0, j):
            emit_filler(("rd", o))
    state0 = list(q.q)
    T = (nk - (S - 1)) // S
    lloop = k.newlabel("loop")
    if T > 0:
        k("s_mov_b32 %s, %d" % (sr(sLoop), T))
        k.label(lloop)
        for u in range(S):
            step(u, True, (S - 2) * P, False)
            assert q.q == state0
        k("s_sub_u32 %s, %s, 1" % (sr(sLoop), sr(sLoop)))
        k("s_cmp_lg_u32 %s, 0" % sr(sLoop))
        k("s_cbranch_scc1 %s" % lloop)
    for kidx in range(T * S, nk):
        do_dma = (kidx + S - 1) < nk
        allowed = min(S - 2, nk - kidx - 2) * P
        step(kidx % S, do_dma, max(allowed, 0), kidx == nk - 1)

    if STAMP:
        k("s_memtime s[86:87]")
    k("s_nop 15")
    k("s_nop 3")
    c.epilogue(k, c, locals())
    if STAMP:
        k("s_waitcnt vmcnt(0)")
        k("s_memtime s[88:89]")
        k("s_memrealtime s[90:91]")
        k("s_waitcnt lgkmcnt(0)")
        k("s_lshl_b32 s92, s2, 6")
        k("s_add_u32 s92, s92, 0x3c00000")
        k("s_add_u32 s96, s%d, s92" % sWS)
        k("s_addc_u32 s97, s%d, 0" % (sWS + 1))
        k("s_and_b32 s97, s97, 0xffff")
        k("s_mov_b32 s98, 64")
        k("s_mov_b32 s99, 0x20000")
        k("v_mov_b32 v1, 0")
        k("v_cmp_eq_u32 vcc, 0, v0")
        k("s_and_saveexec_b64 s[94:95], vcc")
        for i in range(12):
            k("v_mov_b32 v2, s%d" % (80 + i))
            k("buffer_store_dword v2, v1, s[96:99], 0 offen offset:%d" % (4 * i))
        k("s_mov_b64 exec, s[94:95]")
    k.label(lend)
    return k, VGPRS, LDS_BYTES


def _epi_setup(k, c, L, NFo):
    MF = c.MF
    R = MF * 32
    RB = NFo * 64
    NCH = RB // 16
    sW, sWM, sWN, sTmp, sTmp2 = L["sW"], L["sWM"], L["sWN"], L["sTmp"], L["sTmp2"]
    k("s_barrier")
    k("s_mul_i32 %s, %s, %d" % (sr(sTmp), sr(sW), R * RB))
    k("v_and_b32 v10, %d, v8" % (NCH - 1))
    k("v_lshlrev_b32 v10, 4, v10")
    k("v_lshl_add_u32 v10, v9, 3, v10")
    k("v_mul_u32_u24 v13, %d, v8" % RB)
    k("v_add_u32 v10, v10, v13")
    k("v_add_u32 v10, %s, v10" % sr(sTmp))
    k("v_lshrrev_b32 v13, %d, v2" % log2(NCH))
    k("v_and_b32 v14, %d, v2" % (NCH - 1))
    k("v_and_b32 v15, %d, v13" % (NCH - 1))
    k("v_xor_b32 v15, v15, v14")
    k("v_lshlrev_b32 v15, 4, v15")
    k("v_mul_u32_u24 v11, %d, v13" % RB)
    k("v_add_u32 v11, v11, v15")
    k("v_add_u32 v11, %s, v11" % sr(sTmp))
    k("s_mul_i32 %s, %s, %d" % (sr(sTmp), sr(sWM), R))
    k("v_add_u32 v13, %s, v13" % sr(sTmp))
    k("v_mul_u32_u24 v12, 0x%x, v13" % c.LDC)
    k("v_lshl_add_u32 v12, v14, 4, v12")
    k("s_mul_i32 %s, %s, %d" % (sr(sTmp), sr(sWN), NFo * 64))
    k("v_add_u32 v12, %s, v12" % sr(sTmp))
    return R, RB, NCH


def _epi_write(k, c, R, RB, mf, chunk, data):
    if chunk:
        k("v_xor_b32 v13, 0x%x, v10" % (chunk * 16))
        k("ds_write_b64 v13, %s offset:%d" % (vr(data, 2), mf * 32 * RB))
    else:
        k("ds_write_b64 v10, %s offset:%d" % (vr(data, 2), mf * 32 * RB))


def _epi_readstore(k, c, L, R, RB, tmpbase):
    sSRDC = L["sSRDC"]
    RPI = 1024 // RB
    NCH = RB // 16
    n = R * RB // 1024
    k("s_waitcnt lgkmcnt(0)")
    for i in range(n):
        x = (i * RPI) & (NCH - 1)
        if x:
            k("v_xor_b32 v13, 0x%x, v11" % (x << 4))
            k("ds_read_b128 %s, v13 offset:%d" % (vr(tmpbase + 4 * i, 4), i * 1024))
        else:
            k("ds_read_b128 %s, v11 offset:%d" % (vr(tmpbase + 4 * i, 4), i * 1024))
    for i in range(n):
        k("s_waitcnt lgkmcnt(%d)" % (n - 1 - i))
        k("buffer_store_dwordx4 %s, v12, %s, 0 offen" % (vr(tmpbase + 4 * i, 4), sr(sSRDC, 4)))
        if i < n - 1:
            k("v_add_u32 v12, 0x%x, v12" % (RPI * c.LDC))


def epi_plain(k, c, L):
    MF, NF = c.MF, c.NF
    acc = L["acc"]
    R, RB, NCH = _epi_setup(k, c, L, NF)
    for mf in range(MF):
        for nf in range(NF):
            a = acc(mf, nf)
            for g in range(4):
                k("v_cvt_pk_bf16_f32 %s, %s, %s" % (vr(a + 4 * g), vr(a + 4 * g), vr(a + 4 * g + 1)))
                k("v_cvt_pk_bf16_f32 %s, %s, %s" % (vr(a + 4 * g + 1), vr(a + 4 * g + 2), vr(a + 4 * g + 3)))
                _epi_write(k, c, R, RB, mf, nf * 4 + g, a + 4 * g)
    _epi_readstore(k, c, L, R, RB, L["ACC"])


def epi_glu(k, c, L):
    MF, NF = c.MF, c.NF
    nh = NF // 2
    acc, sTmp = L["acc"], L["sTmp"]
    FR = L["FR"]
    R, RB, NCH = _epi_setup(k, c, L, nh)
    k("s_mov_b32 %s, 0xbfb8aa3b" % sr(sTmp))
    T0 = FR[0]
    cnt = 0
    for mf in range(MF):
        for i in range(nh):
            ga, ua = acc(mf, i), acc(mf, nh + i)
            for g in range(4):
                t = [T0 + 8 * (cnt & 1) + j for j in range(8)]
                cnt += 1
                for j in range(4):
                    k("v_cvt_pk_bf16_f32 %s, %s, %s" % (vr(t[j]), vr(ga + 4 * g + j), vr(ua + 4 * g + j)))
                for j in range(4):
                    k("v_lshlrev_b32 %s, 16, %s" % (vr(t[4 + j]), vr(t[j])))
                for j in range(4):
                    k("v_mul_f32 %s, %s, %s" % (vr(t[4 + j]), sr(sTmp), vr(t[4 + j])))
                for j in range(4):
                    k("v_exp_f32 %s, %s" % (vr(t[4 + j]), vr(t[4 + j])))
                for j in range(4):
                    k("v_add_f32 %s, 1.0, %s" % (vr(t[4 + j]), vr(t[4 + j])))
                for j in range(4):
                    k("v_rcp_f32 %s, %s" % (vr(t[4 + j]), vr(t[4 + j])))
                for j in range(4):
                    k("v_and_b32 %s, 0xffff0000, %s" % (vr(t[j]), vr(t[j])))
                k("v_cvt_pk_bf16_f32 %s, %s, %s" % (vr(t[4]), vr(t[4]), vr(t[5])))
                k("v_cvt_pk_bf16_f32 %s, %s, %s" % (vr(t[6]), vr(t[6]), vr(t[7])))
                k("v_and_b32 %s, 0xffff0000, %s" % (vr(t[5]), vr(t[4])))
                k("v_lshlrev_b32 %s, 16, %s" % (vr(t[4]), vr(t[4])))
                k("v_and_b32 %s, 0xffff0000, %s" % (vr(t[7]), vr(t[6])))
                k("v_lshlrev_b32 %s, 16, %s" % (vr(t[6]), vr(t[6])))
                for j in range(4):
                    k("v_mul_f32 %s, %s, %s" % (vr(t[j]), vr(t[4 + j]), vr(t[j])))
                o = ga + 4 * g
                k("v_cvt_pk_bf16_f32 %s, %s, %s" % (vr(o), vr(t[0]), vr(t[1])))
                k("v_cvt_pk_bf16_f32 %s, %s, %s" % (vr(o + 1), vr(t[2]), vr(t[3])))
                _epi_write(k, c, R, RB, mf, i * 4 + g, o)
    _epi_readstore(k, c, L, R, RB, L["ACC"])


def epi_f32(k, c, L):
    MF, NF = c.MF, c.NF
    acc = L["acc"]
    R = MF * 32
    RB = NF * 128
    NCH = RB // 16
    sW, sWM, sWN, sTmp = L["sW"], L["sWM"], L["sWN"], L["sTmp"]
    k("s_barrier")
    k("s_mul_i32 %s, %s, %d" % (sr(sTmp), sr(sW), R * RB))
    k("v_and_b32 v10, %d, v8" % (NCH - 1))
    k("v_xor_b32 v10, v10, v9")
    k("v_lshlrev_b32 v10, 4, v10")
    k("v_mul_u32_u24 v13, %d, v8" % RB)
    k("v_add_u32 v10, v10, v13")
    k("v_add_u32 v10, %s, v10" % sr(sTmp))
    k("v_lshrrev_b32 v13, %d, v2" % log2(NCH))
    k("v_and_b32 v14, %d, v2" % (NCH - 1))
    k("v_and_b32 v15, %d, v13" % (NCH - 1))
    k("v_xor_b32 v15, v15, v14")
    k("v_lshlrev_b32 v15, 4, v15")
    k("v_mul_u32_u24 v11, %d, v13" % RB)
    k("v_add_u32 v11, v11, v15")
    k("v_add_u32 v11, %s, v11" % sr(sTmp))
    k("s_mul_i32 %s, %s, %d" % (sr(sTmp), sr(sWM), R))
    k("v_add_u32 v13, %s, v13" % sr(sTmp))
    k("v_mul_u32_u24 v12, 0x%x, v13" % c.LDC)
    k("v_lshl_add_u32 v12, v14, 4, v12")
    k("s_mul_i32 %s, %s, %d" % (sr(sTmp), sr(sWN), RB))
    k("v_add_u32 v12, %s, v12" % sr(sTmp))
    for mf in range(MF):
        for nf in range(NF):
            a = acc(mf, nf)
            for g in range(4):
                cb = nf * 8 + 2 * g
                if cb:
                    k("v_xor_b32 v13, 0x%x, v10" % (cb * 16))
                    k("ds_write_b128 v13, %s offset:%d" % (vr(a + 4 * g, 4), mf * 32 * RB))
                else:
                    k("ds_write_b128 v10, %s offset:%d" % (vr(a + 4 * g, 4), mf * 32 * RB))
    _epi_readstore(k, c, L, R, RB, L["ACC"])
```

```python
import sys
from common import *
from gemm import gen_gemm, epi_plain, epi_glu, epi_f32


class GemmCfg:
    WM, WN = 2, 2


def blocked_decode(tilesM, tilesN, BMb, BNb, nbatch):
    def dec(k, sT, sZ, sTM, sTN, sTmp, sTmp2):
        lb = log2(BMb * BNb)
        nbN = tilesN // BNb
        nbM = tilesM // BMb
        lper = log2(nbN * nbM)
        k("s_and_b32 %s, %s, %d" % (sr(sTmp), sr(sT), BMb * BNb - 1))
        k("s_lshr_b32 %s, %s, %d" % (sr(sTmp2), sr(sT), lb))
        if nbatch > 1:
            k("s_lshr_b32 %s, %s, %d" % (sr(sZ), sr(sTmp2), lper))
            k("s_and_b32 %s, %s, %d" % (sr(sTmp2), sr(sTmp2), nbN * nbM - 1))
        else:
            k("s_mov_b32 %s, 0" % sr(sZ))
        k("s_lshr_b32 %s, %s, %d" % (sr(sTM), sr(sTmp2), log2(nbN)))
        k("s_and_b32 %s, %s, %d" % (sr(sTN), sr(sTmp2), nbN - 1))
        k("s_lshl_b32 %s, %s, %d" % (sr(sTM), sr(sTM), log2(BMb)))
        k("s_lshl_b32 %s, %s, %d" % (sr(sTN), sr(sTN), log2(BNb)))
        k("s_lshr_b32 %s, %s, %d" % (sr(sTmp2), sr(sTmp), log2(BNb)))
        k("s_add_u32 %s, %s, %s" % (sr(sTM), sr(sTM), sr(sTmp2)))
        k("s_and_b32 %s, %s, %d" % (sr(sTmp2), sr(sTmp), BNb - 1))
        k("s_add_u32 %s, %s, %s" % (sr(sTN), sr(sTN), sr(sTmp2)))

    return dec


def dec_g3(k, sT, sZ, sTM, sTN, sTmp, sTmp2):
    k("s_mov_b32 %s, 0" % sr(sZ))
    k("s_and_b32 %s, %s, 15" % (sr(sTM), sr(sT)))
    k("s_lshr_b32 %s, %s, 4" % (sr(sTN), sr(sT)))


def cfg_g1(S=4):
    c = GemmCfg()
    c.MF, c.NF, c.S = 2, 2, S
    c.Kdim = D_
    c.NWG = 256
    c.nlayout = "NT"
    c.glu = False
    c.msrc = [("arg", KARG["Wre"]), ("arg", KARG["Wim"])]
    c.msize, c.LDM = D_ * D_ * 2, D_ * 2
    c.nsrc = [("ws", WS["xn"]), ("ws", WS["xn"])]
    c.nsize, c.LDN = S_ * D_ * 2, D_ * 2
    c.dst = [("ws", WS["aT"]), ("ws", WS["bT"])]
    c.csize, c.LDC = D_ * S_ * 2, S_ * 2
    c.NOUT = 128
    c.decode = blocked_decode(8, 16, 4, 8, 2)
    c.epilogue = epi_plain
    return c


def cfg_g2(S=4):
    c = GemmCfg()
    c.MF, c.NF, c.S = 2, 2, S
    c.Kdim = S_
    c.NWG = 256
    c.nlayout = "NT"
    c.glu = False
    c.msrc = [("arg", KARG["Cr"]), ("arg", KARG["Ci"])]
    c.msize, c.LDM = S_ * S_ * 2, S_ * 2
    c.nsrc = [("ws", WS["aT"]), ("ws", WS["bT"])]
    c.nsize, c.LDN = D_ * S_ * 2, S_ * 2
    c.dst = [("ws", WS["P"]), ("ws", WS["Q"])]
    c.csize, c.LDC = S_ * D_ * 2, D_ * 2
    c.NOUT = 128
    c.decode = blocked_decode(16, 8, 4, 8, 2)
    c.epilogue = epi_plain
    return c


def dec_g3b(k, sT, sZ, sTM, sTN, sTmp, sTmp2):
    k("s_mov_b32 %s, 0" % sr(sZ))
    k("s_and_b32 %s, %s, 7" % (sr(sTM), sr(sT)))
    k("s_lshr_b32 %s, %s, 3" % (sr(sTN), sr(sT)))


def cfg_g3b(S=2):
    c = cfg_g3(S)
    c.WM, c.WN, c.MF, c.NF = 4, 2, 2, 4
    c.NWG = 8 * 28
    c.NOUT = 128
    c.decode = dec_g3b
    c.block = 512
    c.dma_split = [8, 0, 0]
    return c


def cfg_g3(S=2):
    c = GemmCfg()
    c.MF, c.NF, c.S = 2, 2, S
    c.Kdim = D_
    c.NWG = 16 * 56
    c.nlayout = "NN"
    c.glu = True
    c.msrc = [("ws", WS["xn"]), ("ws", WS["xn"])]
    c.msize, c.LDM = S_ * D_ * 2, D_ * 2
    c.nsrc = [("arg", KARG["Wg"]), ("arg", KARG["Wu"])]
    c.nsize, c.LDN = D_ * F_ * 2, F_ * 2
    c.dst = [("ws", WS["h"]), ("ws", WS["h"])]
    c.csize, c.LDC = S_ * F_ * 2, F_ * 2
    c.NOUT = 64
    c.decode = dec_g3
    c.epilogue = epi_glu
    return c


def cfg_g4s(S=4):
    c = GemmCfg()
    c.MF, c.NF, c.S = 2, 2, S
    KH = F_ // 2
    c.Kdim = KH
    c.NWG = 256
    c.nlayout = "NN"
    c.glu = False
    c.msrc = [("ws", WS["h"]), ("ws", WS["h"] + KH * 2)]
    c.msize, c.LDM = S_ * F_ * 2 - KH * 2, F_ * 2
    c.nsrc = [("arg", KARG["Wd"], 0), ("arg", KARG["Wd"], KH * D_ * 2)]
    c.nsize, c.LDN = KH * D_ * 2, D_ * 2
    c.dst = [("ws", WS["o32"]), ("ws", WS["o32"] + S_ * D_ * 4)]
    c.csize, c.LDC = S_ * D_ * 4, D_ * 4
    c.OB = 4
    c.NOUT = 128
    c.decode = blocked_decode(16, 8, 4, 8, 2)
    c.epilogue = epi_f32
    return c


def cfg_g4(S=4):
    c = GemmCfg()
    c.MF, c.NF, c.S = 2, 1, S
    c.Kdim = F_
    c.NWG = 256
    c.nlayout = "NN"
    c.glu = False
    c.msrc = [("ws", WS["h"]), ("ws", WS["h"])]
    c.msize, c.LDM = S_ * F_ * 2, F_ * 2
    c.nsrc = [("arg", KARG["Wd"]), ("arg", KARG["Wd"])]
    c.nsize, c.LDN = F_ * D_ * 2, D_ * 2
    c.dst = [("ws", WS["o"]), ("ws", WS["o"])]
    c.csize, c.LDC = S_ * D_ * 2, D_ * 2
    c.NOUT = 64
    c.decode = blocked_decode(16, 16, 4, 8, 1)
    c.epilogue = epi_plain
    return c


def gen_ln(name, mode, o32=False):
    k = K(name)
    lend = k.newlabel("end")
    k("s_cmp_ge_u32 s2, 512")
    k("s_cbranch_scc1 %s" % lend)
    sWS, sAX, sOUT = 20, 22, 24
    load_ptr(k, sWS, KARG["ws"])
    if mode == "first":
        load_ptr(k, sAX, KARG["Ax"])
    if mode == "final":
        load_ptr(k, sOUT, KARG["out"])
    k("s_lshl_b32 s3, s2, 13")
    k("v_lshlrev_b32 v1, 4, v0")
    k("v_lshrrev_b32 v2, 6, v0")
    k("v_lshl_add_u32 v1, v2, 10, v1")
    k("s_waitcnt lgkmcnt(0)")
    SZ = S_ * D_ * 2
    sX, sA, sB, sO = 4, 8, 12, 16
    if mode == "first":
        build_srd(k, sX, sAX, SZ)
    else:
        build_srd(k, sX, sWS, SZ, WS["x"])
    if mode == "pq":
        build_srd(k, sA, sWS, SZ, WS["P"])
        build_srd(k, sB, sWS, SZ, WS["Q"])
    elif mode in ("o", "final"):
        if o32:
            build_srd(k, sA, sWS, SZ * 2, WS["o32"])
            build_srd(k, sB, sWS, SZ * 2, WS["o32"] + SZ * 2)
        else:
            build_srd(k, sA, sWS, SZ, WS["o"])
    X = 4
    k("buffer_load_dwordx4 %s, v1, %s, s3 offen" % (vr(X, 4), sr(sX, 4)))
    k("buffer_load_dwordx4 %s, v1, %s, s3 offen offset:1024" % (vr(X + 4, 4), sr(sX, 4)))
    A, B = 12, 20
    if mode == "pq":
        k("buffer_load_dwordx4 %s, v1, %s, s3 offen" % (vr(A, 4), sr(sA, 4)))
        k("buffer_load_dwordx4 %s, v1, %s, s3 offen offset:1024" % (vr(A + 4, 4), sr(sA, 4)))
        k("buffer_load_dwordx4 %s, v1, %s, s3 offen" % (vr(B, 4), sr(sB, 4)))
        k("buffer_load_dwordx4 %s, v1, %s, s3 offen offset:1024" % (vr(B + 4, 4), sr(sB, 4)))
    elif mode in ("o", "final") and o32:
        k("s_lshl_b32 s31, s3, 1")
        k("v_lshlrev_b32 v3, 1, v1")
        for p, sp in enumerate((sA, sB)):
            for q_ in range(4):
                k("buffer_load_dwordx4 %s, v3, %s, s31 offen offset:%d" % (vr(64 + 16 * p + 4 * q_, 4), sr(sp, 4), (q_ >> 1) * 2048 + (q_ & 1) * 16))
    elif mode in ("o", "final"):
        k("buffer_load_dwordx4 %s, v1, %s, s3 offen" % (vr(A, 4), sr(sA, 4)))
        k("buffer_load_dwordx4 %s, v1, %s, s3 offen offset:1024" % (vr(A + 4, 4), sr(sA, 4)))
    k("s_mov_b32 s30, 0xffff0000")
    if mode != "final":
        build_srd(k, 32, sWS, SZ, WS["x"])
        build_srd(k, 36, sWS, SZ, WS["xn"])
    else:
        build_srd(k, 32, sOUT, SZ)
    k("s_waitcnt vmcnt(0)")
    F = 32
    T = 48
    if mode in ("o", "final") and o32:
        for i in range(16):
            k("v_add_f32 %s, %s, %s" % (vr(64 + i), vr(64 + i), vr(80 + i)))
        for d in range(8):
            k("v_cvt_pk_bf16_f32 %s, %s, %s" % (vr(A + d), vr(64 + 2 * d), vr(64 + 2 * d + 1)))
    if mode == "first":
        pass
    else:
        for d in range(8):
            if mode == "pq":
                k("v_lshlrev_b32 %s, 16, %s" % (vr(T), vr(A + d)))
                k("v_lshlrev_b32 %s, 16, %s" % (vr(T + 1), vr(B + d)))
                k("v_and_b32 %s, s30, %s" % (vr(T + 2), vr(A + d)))
                k("v_and_b32 %s, s30, %s" % (vr(T + 3), vr(B + d)))
                k("v_sub_f32 %s, %s, %s" % (vr(T), vr(T), vr(T + 1)))
                k("v_sub_f32 %s, %s, %s" % (vr(T + 2), vr(T + 2), vr(T + 3)))
                k("v_cvt_pk_bf16_f32 %s, %s, %s" % (vr(A + d), vr(T), vr(T + 2)))
            k("v_lshlrev_b32 %s, 16, %s" % (vr(T), vr(X + d)))
            k("v_lshlrev_b32 %s, 16, %s" % (vr(T + 1), vr(A + d)))
            k("v_and_b32 %s, s30, %s" % (vr(T + 2), vr(X + d)))
            k("v_and_b32 %s, s30, %s" % (vr(T + 3), vr(A + d)))
            k("v_add_f32 %s, %s, %s" % (vr(T), vr(T), vr(T + 1)))
            k("v_add_f32 %s, %s, %s" % (vr(T + 2), vr(T + 2), vr(T + 3)))
            k("v_cvt_pk_bf16_f32 %s, %s, %s" % (vr(X + d), vr(T), vr(T + 2)))
    k("buffer_store_dwordx4 %s, v1, s[32:35], s3 offen" % vr(X, 4))
    k("buffer_store_dwordx4 %s, v1, s[32:35], s3 offen offset:1024" % vr(X + 4, 4))
    if mode == "final":
        k.label(lend)
        return k, 96
    for d in range(8):
        k("v_lshlrev_b32 %s, 16, %s" % (vr(F + 2 * d), vr(X + d)))
        k("v_and_b32 %s, s30, %s" % (vr(F + 2 * d + 1), vr(X + d)))

    def wave_reduce(v, tmp):
        k("s_nop 1")
        k("v_add_f32_dpp %s, %s, %s quad_perm:[1,0,3,2] row_mask:0xf bank_mask:0xf" % (vr(v), vr(v), vr(v)))
        k("s_nop 1")
        k("v_add_f32_dpp %s, %s, %s quad_perm:[2,3,0,1] row_mask:0xf bank_mask:0xf" % (vr(v), vr(v), vr(v)))
        k("s_nop 1")
        k("v_add_f32_dpp %s, %s, %s row_half_mirror row_mask:0xf bank_mask:0xf" % (vr(v), vr(v), vr(v)))
        k("s_nop 1")
        k("v_add_f32_dpp %s, %s, %s row_mirror row_mask:0xf bank_mask:0xf" % (vr(v), vr(v), vr(v)))
        k("s_nop 1")
        k("v_readlane_b32 s40, %s, 0" % vr(v))
        k("v_readlane_b32 s41, %s, 16" % vr(v))
        k("v_readlane_b32 s42, %s, 32" % vr(v))
        k("v_readlane_b32 s43, %s, 48" % vr(v))
        k("s_nop 3")
        k("v_mov_b32 %s, s40" % vr(v))
        k("v_add_f32 %s, s41, %s" % (vr(v), vr(v)))
        k("v_add_f32 %s, s42, %s" % (vr(v), vr(v)))
        k("v_add_f32 %s, s43, %s" % (vr(v), vr(v)))

    SUM = 56
    k("v_add_f32 %s, %s, %s" % (vr(SUM), vr(F), vr(F + 1)))
    for i in range(2, 16):
        k("v_add_f32 %s, %s, %s" % (vr(SUM), vr(SUM), vr(F + i)))
    wave_reduce(SUM, None)
    k("v_mul_f32 %s, 0x3a800000, %s" % (vr(SUM), vr(SUM)))
    SQ = 57
    k("v_sub_f32 %s, %s, %s" % (vr(T), vr(F), vr(SUM)))
    k("v_mul_f32 %s, %s, %s" % (vr(SQ), vr(T), vr(T)))
    for i in range(1, 16):
        k("v_sub_f32 %s, %s, %s" % (vr(T), vr(F + i), vr(SUM)))
        k("v_fmac_f32 %s, %s, %s" % (vr(SQ), vr(T), vr(T)))
    wave_reduce(SQ, None)
    k("v_mul_f32 %s, 0x3a800000, %s" % (vr(SQ), vr(SQ)))
    k("v_cvt_pk_bf16_f32 %s, %s, %s" % (vr(SUM), vr(SUM), vr(SQ)))
    k("v_and_b32 %s, s30, %s" % (vr(SQ), vr(SUM)))
    k("v_lshlrev_b32 %s, 16, %s" % (vr(SUM), vr(SUM)))
    k("v_add_f32 %s, 0x3727c5ac, %s" % (vr(SQ), vr(SQ)))
    k("v_cvt_pk_bf16_f32 %s, %s, %s" % (vr(SQ), vr(SQ), vr(SQ)))
    k("v_lshlrev_b32 %s, 16, %s" % (vr(SQ), vr(SQ)))
    k("v_sqrt_f32 %s, %s" % (vr(SQ), vr(SQ)))
    k("s_nop 0")
    k("v_cvt_pk_bf16_f32 %s, %s, %s" % (vr(SQ), vr(SQ), vr(SQ)))
    k("v_lshlrev_b32 %s, 16, %s" % (vr(SQ), vr(SQ)))
    RC = 58
    k("v_rcp_f32 %s, %s" % (vr(RC), vr(SQ)))
    for d in range(8):
        k("v_sub_f32 %s, %s, %s" % (vr(F + 2 * d), vr(F + 2 * d), vr(SUM)))
        k("v_sub_f32 %s, %s, %s" % (vr(F + 2 * d + 1), vr(F + 2 * d + 1), vr(SUM)))
        k("v_cvt_pk_bf16_f32 %s, %s, %s" % (vr(T), vr(F + 2 * d), vr(F + 2 * d + 1)))
        k("v_lshlrev_b32 %s, 16, %s" % (vr(F + 2 * d), vr(T)))
        k("v_and_b32 %s, s30, %s" % (vr(F + 2 * d + 1), vr(T)))
    for i in range(16):
        f = F + i
        t0, t1 = T + 2 * (i % 4), T + 2 * (i % 4) + 1
        k("v_mul_f32 %s, %s, %s" % (vr(t0), vr(f), vr(RC)))
        k("v_fma_f32 %s, -%s, %s, %s" % (vr(t1), vr(t0), vr(SQ), vr(f)))
        k("v_fma_f32 %s, %s, %s, %s" % (vr(f), vr(t1), vr(RC), vr(t0)))
    for d in range(8):
        k("v_cvt_pk_bf16_f32 %s, %s, %s" % (vr(X + d), vr(F + 2 * d), vr(F + 2 * d + 1)))
    k("buffer_store_dwordx4 %s, v1, s[36:39], s3 offen" % vr(X, 4))
    k("buffer_store_dwordx4 %s, v1, s[36:39], s3 offen offset:1024" % vr(X + 4, 4))
    k.label(lend)
    return k, 96


def build(opts=None):
    opts = opts or {}
    pre = "il_"
    kernels = []
    launches = []

    def add(k, vgprs, grid, block, lds):
        kernels.append((k, vgprs))
        return (k.name, grid, block, lds)

    ln_first, v = gen_ln(pre + "ln_first_kernel", "first")
    L_ln_first = add(ln_first, v, 512, 256, 0)
    ln_pq, v = gen_ln(pre + "ln_pq_kernel", "pq")
    L_ln_pq = add(ln_pq, v, 512, 256, 0)
    O32 = bool(opts.get("g4s", 1))
    ln_o, v = gen_ln(pre + "ln_o_kernel", "o", O32)
    L_ln_o = add(ln_o, v, 512, 256, 0)
    ln_fin, v = gen_ln(pre + "ln_final_kernel", "final", O32)
    L_fin = add(ln_fin, v, 512, 256, 0)
    gl = []
    g3cfg = cfg_g3b() if opts.get("g3b", 1) else cfg_g3(opts.get("S3", 2))
    for nm, cfg in (("g1", cfg_g1()), ("g2", cfg_g2()), ("g3", g3cfg), ("g4", cfg_g4s() if O32 else cfg_g4())):
        for key in ("nomfma", "nodma", "sametile", "stamp", "novmwait"):
            if opts.get(key):
                setattr(cfg, key, True)
        k, v, lds = gen_gemm(pre + nm + "_kernel", cfg)
        gl.append(add(k, v, cfg.NWG, getattr(cfg, "block", 256), lds))
    G1, G2, G3, G4 = gl
    seq = [L_ln_first, G1, G2, L_ln_pq, G3, G4, L_ln_o, G1, G2, L_ln_pq, G3, G4, L_fin]
    if "upto" in opts:
        seq = seq[: opts["upto"]]
    out = [HEADER]
    for (nm, grid, block, lds) in seq:
        out.append("; @launch kernel=%s grid=(%d,1,1) block=(%d,1,1) lds=%d\n" % (nm, grid, block, lds))
    out.append('.amdgcn_target "amdgcn-amd-amdhsa--gfx950"\n.text\n')
    for k, v in kernels:
        out.append(k.text(v))
    out.append('.section .rodata,"a"\n.p2align 6\n')
    for k, v in kernels:
        out.append(".p2align 6\n" + k.desc(v))
    return "".join(out)


if __name__ == "__main__":
    dst = sys.argv[1] if len(sys.argv) > 1 else "interleave_layers__spectral_fnet__glu_gated_glu__prompt.s"
    opts = {}
    for a in sys.argv[2:]:
        kk, vv = a.split("=")
        opts[kk] = int(vv)
    open(dst, "w").write(build(opts))
    print("written", dst)
```
